```python
import torch

def _softmax(x, axis=-1):
    return torch.softmax(x, dim=axis)
def _gelu(x):
    return torch.nn.functional.gelu(x, approximate="tanh")
def _silu(x):
    return torch.nn.functional.silu(x)
def _sigmoid(x):
    return torch.sigmoid(x)
def _layernorm(x, axis=-1, eps=1e-5):
    m = x.mean(dim=axis, keepdim=True)
    v = x.var(dim=axis, keepdim=True, unbiased=False)
    return (x - m) / torch.sqrt(v + eps)
def _scatter_add(tgt, idx, src, axis=0):
    return tgt.clone().index_add_(axis, idx, src)
def _segment_sum(src, seg, n):
    out = torch.zeros((n,) + src.shape[1:], dtype=src.dtype)
    return out.index_add_(0, seg, src)
def _pad(x, pw):
    flat = tuple(v for pair in reversed(pw) for v in pair)
    return torch.nn.functional.pad(x, flat)

kernel_name = 'gated_mix__compressed_kv_cla__moe_arch_mod__prompt'

def setup_inputs():

    _w = (lambda a: (lambda t: t.to(torch.bfloat16) if t.is_floating_point() else t)(torch.as_tensor(a)))
    def _A_setup():
        B, H, Sq, Sk, D, M = 1, 32, 2048, 2048, 128, 512
        Dc = 4 * D
        return {
            "x": _w((lambda *s: torch.randn(*s, dtype=torch.bfloat16) * 0.05)(B, Sq, M)),
            "c_kv": _w((lambda *s: torch.randn(*s, dtype=torch.bfloat16) * 0.8)(B, Sk, Dc)),
            "w_q": _w((lambda *s: torch.randn(*s, dtype=torch.bfloat16) * 6.4)(M, H, D) * (M ** -0.5)),
            "w_uk": _w((lambda *s: torch.randn(*s, dtype=torch.bfloat16) * 6.4)(Dc, H, D) * (Dc ** -0.5)),
            "w_uv": _w((lambda *s: torch.randn(*s, dtype=torch.bfloat16) * 0.8)(Dc, H, D) * (Dc ** -0.5)),
            "w_o": _w((lambda *s: torch.randn(*s, dtype=torch.bfloat16) * 0.8)(H, D, M) * ((H * D) ** -0.5)),
        }
    _A_in = _A_setup()

    def _B_setup():
        B, S, D, F, C = 1, 2048, 512, 1792, 2
        return {
            "x": _w((lambda *s: torch.randn(*s, dtype=torch.bfloat16) * 0.05)(B, S, D)),
            "w_r": _w((lambda *s: torch.randn(*s, dtype=torch.bfloat16) * 3.2)(D)),
            "w_gate": _w((lambda *s: torch.randn(*s, dtype=torch.bfloat16) * 0.2)(D, F)),
            "w_up": _w((lambda *s: torch.randn(*s, dtype=torch.bfloat16) * 0.2)(D, F)),
            "w_down": _w((lambda *s: torch.randn(*s, dtype=torch.bfloat16) * 0.2)(F, D)),
        }
    _B_in = _B_setup()

    return {
        "A_x": _A_in["x"],
        "A_c_kv": _A_in["c_kv"],
        "A_w_q": _A_in["w_q"],
        "A_w_uk": _A_in["w_uk"],
        "A_w_uv": _A_in["w_uv"],
        "A_w_o": _A_in["w_o"],
        "B_x": _B_in["x"],
        "B_w_r": _B_in["w_r"],
        "B_w_gate": _B_in["w_gate"],
        "B_w_up": _B_in["w_up"],
        "B_w_down": _B_in["w_down"],
        "gate_w": _w((lambda *s: torch.randn(*s, dtype=torch.bfloat16) * 0.05)(512) * 16.0),
    }

def reference(A_x, A_c_kv, A_w_q, A_w_uk, A_w_uv, A_w_o, B_x, B_w_r, B_w_gate, B_w_up, B_w_down, gate_w):
    def _A_ref(x, c_kv, w_q, w_uk, w_uv, w_o):
        B, Sq, M = x.shape[0], x.shape[1], x.shape[2]
        Sk = c_kv.shape[1]
        H, D = w_q.shape[1], w_q.shape[2]
        q = torch.einsum("bqm,mhd->bhqd", x, w_q)
        k = torch.einsum("bkc,chd->bhkd", c_kv, w_uk)
        v = torch.einsum("bkc,chd->bhkd", c_kv, w_uv)
        scores = torch.einsum("bhqd,bhkd->bhqk", q, k) * (D ** -0.5)
        off = Sk - Sq
        qi = torch.arange(Sq)[:, None]
        kj = torch.arange(Sk)[None, :]
        cmask = kj <= (qi + off)
        scores = torch.where(cmask[None, None], scores, -1e9)
        p = _softmax(scores, axis=-1)
        ctx = torch.einsum("bhqk,bhkd->bhqd", p, v)
        return torch.einsum("bhqd,hdm->bqm", ctx, w_o)

    def _B_ref(x, w_r, w_gate, w_up, w_down):
        B, S, D = x.shape
        C = 2
        r = x @ w_r
        idx = torch.argsort(-r, axis=-1)[:, :C]
        idx_e = (lambda x, n, axis: torch.repeat_interleave(x, n, dim=axis))(idx.reshape(B, C, 1), D, axis=2)
        x_sel = (lambda x, i, axis: torch.take_along_dim(x, i, dim=axis))(x, idx_e, axis=1)
        g = _silu(x_sel @ w_gate)
        u = x_sel @ w_up
        y = (g * u) @ w_down
        r_sel = _sigmoid((lambda x, i, axis: torch.take_along_dim(x, i, dim=axis))(r, idx, axis=1))
        y = y * r_sel.reshape(B, C, 1)
        b_off = (torch.arange(B) * S).reshape(B, 1)
        flat_idx = (idx + b_off).reshape(B * C)
        zero = (x * 0.0).reshape(B * S, D)
        upd = _scatter_add(zero, flat_idx, y.reshape(B * C, D), axis=0)
        return x + upd.reshape(B, S, D)

    x = A_x
    g = _sigmoid((x * gate_w).sum(-1, keepdims=True))
    a = _A_ref(x, A_c_kv, A_w_q, A_w_uk, A_w_uv, A_w_o)
    b = _B_ref(x, B_w_r, B_w_gate, B_w_up, B_w_down)
    return g * a + (1 - g) * b
```

```python
import re
class Asm:
    def __init__(self):
        self.lines = []
        self._uid = 0
        self.vm = []
        self.out = 0; self.maxout = 0
        self.lg = []
    def __call__(self, s):
        if isinstance(s, (list,)):
            for x in s: self(x)
            return
        tag = None
        if isinstance(s, tuple):
            if s[0] == "RAW":
                for x in s[1]: self.lines.append("    " + x)
                return
            if s[0] == "WAITVM":
                n = min(self.vm_after(s[1]), 63)
                self.out = min(self.out, n)
                s = "s_waitcnt vmcnt(%d)%s" % (n, (" " + s[2]) if len(s) > 2 else "")
            elif s[0] == "WAITLG":
                idx = [i for i, t in enumerate(self.lg) if t == s[1]]
                if not idx: return
                n = len(self.lg) - 1 - idx[-1]
                self.lg = self.lg[idx[-1] + 1:]
                s = "s_waitcnt lgkmcnt(%d)" % min(n, 15)
            else:
                s, tag = s
        for ln in s.split("\n"):
            ln = ln.strip()
            if ln:
                if ln.startswith("buffer_") or ln.startswith("global_"):
                    self.vm.append(tag)
                    self.out += 1
                    self.maxout = max(self.maxout, self.out)
                if ln.startswith("ds_"): self.lg.append(tag)
                if ln.startswith("s_waitcnt") and "lgkmcnt(0)" in ln: self.lg = []
                self.lines.append("    " + ln)
    def vm_after(self, tag):
        idx = [i for i, t in enumerate(self.vm) if t == tag]
        assert idx, "no vmem op with tag %s" % str(tag)
        return len(self.vm) - 1 - idx[-1]
    def label(self, l):
        self.lines.append(l + ":")
    def raw(self, s):
        self.lines.append(s)
    def uid(self, p="L"):
        self._uid += 1
        return "%s_%d" % (p, self._uid)
    def text(self):
        return "\n".join(self.lines) + "\n"

def vr(b, n=1):
    return "v%d" % b if n == 1 else "v[%d:%d]" % (b, b + n - 1)
def ar(b, n=1):
    return "a%d" % b if n == 1 else "a[%d:%d]" % (b, b + n - 1)
def sr(b, n=1):
    return "s%d" % b if n == 1 else "s[%d:%d]" % (b, b + n - 1)

def cost(ins):
    s = ins[0] if isinstance(ins, tuple) else ins
    if s.startswith(("v_exp", "v_rcp", "v_log")): return 2
    return 1

def fill(A, mfmas, streams, cap=2, pre=None, post=None):
    qs = [[st[0], list(st[1]), st[2] if len(st) > 2 else cap] for st in streams]
    for i, m in enumerate(mfmas):
        if pre and i in pre:
            A(pre[i])
        A(m)
        room = cap
        if pre and (i + 1) in pre:
            room -= sum(cost(x) for x in pre[i + 1])
        if post and i in post:
            A(post[i]); room -= sum(cost(x) for x in post[i])
        for q in qs:
            if i < q[0]: continue
            used = 0
            while q[1] and room >= cost(q[1][0]) and used + cost(q[1][0]) <= q[2]:
                x = q[1].pop(0)
                A(x); room -= cost(x); used += cost(x)
    left = 0
    for q in qs:
        for x in q[1]:
            A(x); left += 1
    return left

def kernel_header(A, name):
    A.raw(".globl %s" % name)
    A.raw(".p2align 8")
    A.raw(".type %s,@function" % name)
    A.label(name)

def kernel_desc(name, nvgpr, accum, nsgpr=102):
    return """.p2align 6
.amdhsa_kernel %s
  .amdhsa_next_free_vgpr %d
  .amdhsa_next_free_sgpr %d
  .amdhsa_accum_offset %d
  .amdhsa_group_segment_fixed_size 0
  .amdhsa_kernarg_size 120
  .amdhsa_user_sgpr_count 2
  .amdhsa_user_sgpr_kernarg_segment_ptr 1
  .amdhsa_system_sgpr_workgroup_id_x 1
.end_amdhsa_kernel
""" % (name, nvgpr, nsgpr, accum)

def srd(A, d, base, nbytes):
    A("s_mov_b32 s%d, s%d" % (d, base))
    A("s_and_b32 s%d, s%d, 0xffff" % (d + 1, base + 1))
    A("s_mov_b32 s%d, 0x%x" % (d + 2, nbytes))
    A("s_mov_b32 s%d, 0x00020000" % (d + 3))

_rx = re.compile(r"^(-|\|)?([vas])(\d+)\|?$|^(-|\|)?([vas])\[(\d+):(\d+)\]\|?$")
def regs(op):
    op = op.strip()
    if op.startswith("-|"): op = op[1:]
    m = _rx.match(op)
    if not m:
        if op in ("vcc", "vcc_lo", "vcc_hi"): return {("s", 106), ("s", 107)}
        if op == "exec": return {("s", 126), ("s", 127)}
        if op == "m0": return {("s", 124)}
        return set()
    if m.group(2):
        return {(m.group(2), int(m.group(3)))}
    return {(m.group(5), i) for i in range(int(m.group(6)), int(m.group(7)) + 1)}

TRANS = ("v_exp_", "v_log_", "v_rcp_", "v_rsq_", "v_sqrt_", "v_sin_", "v_cos_")
class Ins:
    def __init__(self, text):
        self.text = text
        t = text.split(";")[0].strip()
        parts = t.split(None, 1)
        self.op = parts[0]
        rest = parts[1] if len(parts) > 1 else ""
        ops = [o.strip() for o in rest.split(",")] if rest else []
        if ops:
            last = ops[-1].split()
            self.mods = last[1:]
            ops[-1] = last[0] if last else ""
        else:
            self.mods = []
        self.ops = ops
        op = self.op
        self.w = set(); self.r = set(); self.srcc = set(); self.ab = set(); self.sdata = set()
        self.mfma = op.startswith("v_mfma")
        self.valu = op.startswith("v_") and not self.mfma
        self.vmem = op.startswith(("buffer_", "global_"))
        self.ds = op.startswith("ds_")
        self.salu = op.startswith("s_")
        self.trans = op.startswith(TRANS)
        self.ws = 1
        if op == "s_nop": self.ws = int(ops[0]) + 1
        if self.mfma:
            self.w = regs(ops[0]); self.ab = regs(ops[1]) | regs(ops[2]); self.srcc = regs(ops[3]); self.r = self.ab | self.srcc
            self.passes = 8 if "32x32x16" in op else 4
        elif self.valu:
            if op.startswith("v_cmp"):
                self.w = regs(ops[0]); rs = ops[1:]
                if op.startswith("v_cmpx"): self.w |= regs("exec")
            elif op.startswith("v_permlane") and "swap" in op:
                self.w = regs(ops[0]) | regs(ops[1]); rs = ops
            elif "_co_" in op:
                self.w = regs(ops[0]) | regs(ops[1]); rs = ops[2:]
            else:
                self.w = regs(ops[0]); rs = ops[1:]
                if op.startswith(("v_fmac", "v_dot2c", "v_writelane", "v_pk_fmac")): rs = ops
            for o in rs: self.r |= regs(o)
            if op.startswith("v_cndmask") and len(ops) == 3: self.r |= regs("vcc")
        elif self.vmem:
            lds = "lds" in self.mods
            if "store" in op or ("atomic" in op):
                if op.startswith("buffer_"):
                    self.sdata = regs(ops[0]); rs = ops
                else:
                    self.sdata = regs(ops[1]); rs = ops
                for o in rs: self.r |= regs(o)
            elif op.startswith("buffer_inv") or op.startswith("buffer_wbl2"):
                pass
            elif lds:
                for o in ops: self.r |= regs(o)
                self.r |= regs("m0")
            else:
                self.w = regs(ops[0])
                for o in ops[1:]: self.r |= regs(o)
            self.lds = lds
        elif self.ds:
            if "write" in op:
                for o in ops: self.r |= regs(o)
            else:
                self.w = regs(ops[0])
                for o in ops[1:]: self.r |= regs(o)
        elif self.salu:
            if op.startswith(("s_cmp", "s_cbranch", "s_branch", "s_waitcnt", "s_barrier", "s_nop", "s_endpgm", "s_sleep", "s_setprio", "s_bitcmp")):
                for o in ops: self.r |= regs(o)
            else:
                if ops: self.w = regs(ops[0])
                for o in ops[1:]: self.r |= regs(o)

def isv(rs): return {x for x in rs if x[0] in "va"}
def iss(rs): return {x for x in rs if x[0] == "s"}

def need(p, c):
    n = 0
    if p.mfma:
        k = {4: (6, 8, 3), 8: (10, 12, 7)}[p.passes]
        if c.mfma:
            if p.w & c.ab: n = max(n, k[1])
            if p.w & c.srcc and p.w != c.srcc: n = max(n, k[0])
        elif c.valu or c.vmem or c.ds:
            if p.w & (c.r | c.w): n = max(n, k[1])
            if c.valu and (p.srcc & c.w): n = max(n, k[2])
    elif p.valu:
        if c.mfma and (isv(p.w) & c.r): n = max(n, 2)
        if p.trans and c.valu and (p.w & c.r): n = max(n, 1)
        if p.trans and (c.vmem or c.ds) and (p.w & c.r): n = max(n, 1)
        if c.vmem and (iss(p.w) & c.r): n = max(n, 5)
        if c.valu and (iss(p.w) & c.r): n = max(n, 2)
        if c.valu and c.op.startswith(("v_readlane", "v_writelane")) and (iss(p.w) & c.r): n = max(n, 4)
        if c.valu and c.op.startswith(("v_readlane", "v_readfirstlane")) and (isv(p.w) & c.r): n = max(n, 1)
        if c.valu and c.op.startswith("v_permlane") and (isv(p.w) & c.r): n = max(n, 2)
        if c.valu and ("dpp" in c.op or any(m.startswith(("row_", "quad_", "wave_")) for m in c.mods)) and (isv(p.w) & c.r): n = max(n, 2)
        if ("s", 126) in p.w and c.mfma: n = max(n, 4)
        if c.salu and (iss(p.w) & c.r): n = max(n, 1)
    elif p.vmem and p.sdata and len(p.sdata) >= 3:
        if (p.sdata & c.w): n = max(n, 2 if c.valu else 1)
    elif p.salu:
        if ("s", 124) in p.w and c.vmem and getattr(c, "lds", False): n = max(n, 1)
    return n

def check_seq(seq, where=""):
    errs = []
    for i, c in enumerate(seq):
        d = 0
        for k in range(i - 1, max(-1, i - 14), -1):
            p = seq[k]
            n = need(p, c)
            if n > d:
                errs.append("%s hazard need %d have %d:\n   %s\n   %s" % (where, n, d, p.text, c.text))
            d += p.ws
            if d >= 12: break
    return errs

def check(A):
    ins = []; labels = {}
    for ln in A.lines:
        s = ln.strip()
        if not s or s.startswith((".", ";")): continue
        if s.endswith(":"):
            labels[s[:-1]] = len(ins); continue
        ins.append(Ins(s))
    errs = []
    seg = []
    for x in ins:
        seg.append(x)
        if x.op in ("s_branch", "s_endpgm", "s_setpc_b64"):
            errs += check_seq(seg, "lin"); seg = []
    errs += check_seq(seg, "lin")
    for i, x in enumerate(ins):
        if x.op.startswith(("s_cbranch", "s_branch")):
            t = labels[x.ops[0]]
            lo = i
            while lo > 0 and i - lo < 13 and ins[lo - 1].op not in ("s_branch", "s_endpgm"): lo -= 1
            hi = t
            while hi < len(ins) and hi - t < 13:
                hi += 1
                if ins[hi - 1].op in ("s_branch", "s_endpgm"): break
            errs += check_seq(ins[lo:i + 1] + ins[t:hi], "br->" + x.ops[0])
    errs = list(dict.fromkeys(errs))
    return errs, len(ins)
```

```python
from asmlib import *
from sched import *
from defs import *

def qk(grp, Sb, zero=False):
    g = 0 if grp == "S" else 1
    out = []
    for ds in range(4):
        for qt in range(2):
            for kt in range(2):
                d = vr(Sb + (qt * 2 + kt) * 4, 4)
                c = d if ds else ("0" if zero else vr(CIN + g * 8 + qt * 4, 4))
                out.append("%s %s, %s, %s, %s" % (MF, d, ar(KF + (ds * 2 + kt) * 4, 4), ar(qfrag(g * 2 + qt, ds), 4), c))
    return out

def pv(grp, Pb, vf=VF):
    g = 0 if grp == "S" else 1
    out = []
    for dt in range(8):
        for qt in range(2):
            d = vr(OREG + g * 64 + (qt * 8 + dt) * 4, 4)
            out.append("%s %s, %s, %s, %s" % (MF, d, ar(vf + dt * 4, 4), vr(Pb + qt * 4, 4), d))
    for qt in range(2):
        d = ar(LREG + g * 8 + qt * 4, 4)
        out.append("%s %s, %s, %s, %s" % (MF, d, ar(ONES, 4), vr(Pb + qt * 4, 4), d))
    return out

def sm(Sb, Pb):
    m = {}
    for i in range(16): m.setdefault(2 * i, []).append("v_exp_f32 v%d, v%d" % (Sb + i, Sb + i))
    for k in range(8): m.setdefault(4 * k + 3, []).append("v_cvt_pk_bf16_f32 v%d, v%d, v%d" % (Pb + k, Sb + 2 * k, Sb + 2 * k + 1))
    return m
def sm1(Sb, Pb): return {g: v for g, v in sm(Sb, Pb).items() if g < 16}
def sm2(Sb, Pb): return {g - 16: v for g, v in sm(Sb, Pb).items() if g >= 16}

def rd(dst, off, tag, va=V_RD):
    return [("ds_read_b128 %s, v%d offset:%d" % (ar(dst + 4 * f, 4), va, off + 1024 * f), (tag, f >> 2)) for f in range(8)]

def mask(Sb):
    out = []
    for r in range(4):
        out.append("v_cndmask_b32 v%d, v%d, v%d, %s" % (Sb + r, Sb + r, V_NEG, sr(MSK + 2 * r, 2)))
        out.append("v_cndmask_b32 v%d, v%d, v%d, %s" % (Sb + 12 + r, Sb + 12 + r, V_NEG, sr(MSK + 2 * r, 2)))
        out.append("v_mov_b32 v%d, v%d" % (Sb + 4 + r, V_NEG))
    return out

def dma(pad=False):
    out = ["v_readlane_b32 s%d, v%d, s%d" % (S_DOFF, V_TAB, S_TT),
           "s_add_u32 m0, s%d, s%d" % (S_SLOT, S_W8K),
           "s_add_u32 s%d, s%d, 1" % (S_TT, S_TT),
           "v_add_u32 v%d, s%d, v%d" % (V_DM, S_DOFF, V_L16)]
    for n in range(8):
        if n == 4: out.append("s_add_u32 m0, m0, 0x1000")
        if n == 4 and pad: out.append("s_nop 0")
        out.append("buffer_load_dwordx4 v%d, %s, %s offen offset:%d sc1 lds" % (V_DM, sr(SRD_WS, 4), "s%d" % S_4K if n >= 4 else "0", 1024 * (n & 3)))
    return out
def slot_adv():
    return ["v_xor_b32 v%d, s%d, v%d" % (V_RD, S_SLOT, V_L16X),
            "s_add_u32 s%d, s%d, 0x8000" % (S_SLOT, S_SLOT),
            "s_and_b32 s%d, s%d, 0x1ffff" % (S_SLOT, S_SLOT)]

def fix_m0(A):
    pass

def window(A, prev, cur, mask_even=False, tail=None, vg=6):
    gp = "S" if prev == "D" else "L"
    gc = "S" if cur == "D" else "L"
    qd = Q(dma(), cap=2)
    A(["s_waitcnt vmcnt(16) lgkmcnt(0)", "s_barrier"])
    qr = Q(rd(KF, 0, "k"))
    step(A, pv("L", P1), [qr, qd], post=sm2(S0, P0), drain=[qr], vmgap=vg)
    qr = Q(rd(VF, 16384, "v"))
    step(A, qk(gc, S0), [qr, qd], pre={0: [("WAITLG", ("k", 0))], 8: [("WAITLG", ("k", 1))]}, post=sm1(S1, P1), drain=[qr], vmgap=vg)
    qr = Q(rd(KF, 8192, "k") if cur == "S" else [])
    qx = Q(mask(S0) if mask_even else [], first=2)
    step(A, pv(gp, P0), [qr, qx, qd], pre={0: [("WAITLG", ("v", 0))], 8: [("WAITLG", ("v", 1))]}, post=sm2(S1, P1), drain=[qr, qx], vmgap=vg)
    qr = Q(rd(VF, 24576, "v") if prev == "S" else [])
    pre = {0: [("WAITLG", ("k", 0))], 8: [("WAITLG", ("k", 1))]} if cur == "S" else {}
    qd.add(slot_adv() + (tail or []))
    n = step(A, qk("L", S1), [qr, Gate(qd, qr)], pre=pre, post=sm1(S0, P0), drain=[qr, qd], vmgap=vg)
    return n

class Gate:
    def __init__(self, q, other):
        self.q = q; self.other = other
        self.cap = q.cap; self.first = q.first; self.period = q.period; self.cool = 0
    @property
    def items(self):
        it = self.q.items
        if it and self.other.items and isinstance(it[0], str) and it[0].startswith("v_xor"): return []
        return it

def fin(A, k, prev):
    gp = "S" if prev == "D" else "L"
    A(["s_waitcnt vmcnt(8) lgkmcnt(0)", "s_barrier"])
    qr = Q(rd(KF, 0, "k") + ["v_xor_b32 v%d, s%d, v%d" % (V_T, S_SLOT, V_L16X)])
    step(A, pv("L", P1), [qr], post=sm2(S0, P0), drain=[qr])
    qr = Q(rd(VF, 16384, "v"))
    step(A, qk("L", S0), [qr], pre={0: [("WAITLG", ("k", 0))], 8: [("WAITLG", ("k", 1))]}, post=sm1(S1, P1), drain=[qr])
    if prev == "S": qr = Q(rd(KF, 24576, "k"))
    else: qr = Q(rd(KF, 16384, "k", va=V_T))
    step(A, pv(gp, P0), [qr], pre={0: [("WAITLG", ("v", 0))], 8: [("WAITLG", ("v", 1))]}, post=sm2(S1, P1), drain=[qr])
    lab = A.uid("nomask")
    A("s_cmp_lg_u32 s%d, 3" % S_W)
    A("s_cbranch_scc1 %s" % lab)
    A(mask(S0))
    A.label(lab)
    smq = []
    m = sm(S0, P0)
    for g in sorted(m): smq += m[g]
    ex = [x for x in smq if x.startswith("v_exp")]; cv = [x for x in smq if x.startswith("v_cvt")]
    order = ex[:3]
    for i in range(3, 16):
        order.append(ex[i])
        if i & 1: order.append(cv[(i - 3) >> 1])
    order += ["s_nop 0", cv[7]]
    qs = Q(order)
    if prev == "S":
        qr = Q(rd(VF, 16384, "v", va=V_T), cap=1)
        step(A, pv("L", P1, vf=KF), [qs, qr], pre={0: [("WAITLG", ("k", 0))], 8: [("WAITLG", ("k", 1))]}, drain=[qr, qs], cap=3)
        A("s_waitcnt lgkmcnt(0)")
        A("s_nop 0")
        A(pv("L", P0))
    else:
        step(A, pv("L", P1), [qs], drain=[qs], cap=3)
        A("s_waitcnt lgkmcnt(0)")
        A("s_nop 0")
        A(pv("L", P0, vf=KF))

def epilogue(A, grp):
    g = 0 if grp == "S" else 1
    base = S_CTXS + g
    T = V_T
    for qt in range(2):
        A("v_accvgpr_read_b32 v%d, a%d" % (T + qt, LREG + g * 8 + qt * 4))
    for qt in range(2):
        A("v_rcp_f32 v%d, v%d" % (T + 2 + qt, T + qt))
    A("v_max_f32 v%d, v%d, v%d" % (T, T, T + 1))
    A("v_cmp_nlt_f32 vcc, v%d, s%d" % (T, S_LIM))
    n = 0
    for ds in range(4):
        A("s_add_u32 s%d, s%d, %d" % (S_X0, base, ds * 4096))
        for qt in range(2):
            t = OREG + g * 64 + qt * 32 + ds * 8
            for i in range(8): A("v_mul_f32 v%d, v%d, v%d" % (t + i, t + i, T + 2 + qt))
            A(cvt8(t))
            A("buffer_store_dwordx4 %s, v%d, %s, s%d offen offset:%d sc1" % (vr(t, 4), V_L16, sr(SRD_WS, 4), S_X0, qt * 1024))
            if n == 0: A("s_or_b64 %s, %s, vcc" % (sr(S_BAD, 2), sr(S_BAD, 2)))
            else: A("s_nop 0")
            A("%s %s, %s, %s, %s" % (MF, vr(T + 4, 4), ar(ZERO, 4), vr(t, 4), vr(T + 4, 4) if n else "0"))
            n += 1
    A("s_nop 7")
    A("v_cmp_u_f32 vcc, v%d, v%d" % (T + 4, T + 4))
    A("s_nop 0")
    A("s_or_b64 %s, %s, vcc" % (sr(S_BAD, 2), sr(S_BAD, 2)))

def zero_a():
    return ["v_accvgpr_write_b32 a%d, 0" % r for r in list(range(VF, VF + 32)) + list(range(LREG, LREG + 16))]
def zero_o(g): return ["v_mov_b32 v%d, 0" % (OREG + 64 * g + r) for r in range(64)]
def zero_p(): return ["v_mov_b32 v%d, 0" % (P1 + r) for r in range(8)]

def setup():
    o = []
    T = V_T
    o += ["s_lshl_b32 s%d, s%d, 13" % (S_W8K, S_W), "s_movk_i32 s%d, 0x1000" % S_4K, "s_mov_b32 s%d, 0" % S_REDO,
          "s_mov_b32 s%d, 0x4e800000" % S_LIM]
    o += ["v_mov_b32 v%d, 0xff800000" % V_NEG, "v_xor_b32 v%d, 0x10000, v%d" % (V_L16X, V_L16)]
    for r in range(4): o.append("v_mov_b32 v%d, 0xff800000" % (V_M + r))
    o.append("v_mov_b32 v%d, 0x3f803f80" % T)
    for r in range(4):
        o.append("v_accvgpr_write_b32 a%d, v%d" % (ONES + r, T))
        o.append("v_accvgpr_write_b32 a%d, 0" % (ZERO + r))
    o += ["v_lshrrev_b32 v%d, 4, v%d" % (T, V_LANE), "v_lshlrev_b32 v%d, 2, v%d" % (T, T), "v_and_b32 v%d, 15, v%d" % (T + 1, V_LANE),
          "v_sub_u32 v%d, v%d, v%d" % (T + 1, T + 1, T)]
    for r in range(4):
        o.append("v_cmp_gt_i32 %s, %d, v%d" % (sr(MSK + 2 * r, 2), r, T + 1))
    for d, sg in ((S_CTXS, S_GS), (S_CTXL, S_GL)):
        o += ["s_lshr_b32 s%d, s%d, 1" % (S_X0, sg), "s_lshl_b32 s%d, s%d, 5" % (S_X0, S_X0), "s_add_u32 s%d, s%d, s%d" % (S_X0, S_X0, S_H),
              "s_lshl_b32 s%d, s%d, 14" % (S_X0, S_X0), "s_and_b32 s%d, s%d, 1" % (S_X1, sg), "s_lshl_b32 s%d, s%d, 11" % (S_X1, S_X1),
              "s_add_u32 s%d, s%d, s%d" % (S_X0, S_X0, S_X1), "s_add_u32 s%d, s%d, 0x%x" % (d, S_X0, CTX_OFF)]
    o += ["s_lshr_b32 s%d, s%d, 1" % (S_X0, S_W),
          "v_subrev_u32 v%d, s%d, v%d" % (T, S_X0, V_LANE),
          "s_lshl_b32 s%d, s%d, 2" % (S_X1, S_J), "s_add_u32 s%d, s%d, 4" % (S_X1, S_X1),
          "v_lshlrev_b32 v%d, 1, v%d" % (T + 1, T), "v_subrev_u32 v%d, s%d, v%d" % (T + 1, S_X1, T + 1),
          "v_max_i32 v%d, v%d, v%d" % (T + 1, T + 1, T),
          "v_add_u32 v%d, 1, v%d" % (T + 2, T + 1),
          "v_sub_u32 v%d, 64, v%d" % (T + 3, T),
          "v_cmp_gt_i32 vcc, s%d, v%d" % (S_X1, T), "s_and_b32 s%d, s%d, 1" % (S_DOFF, S_W), "s_nop 0",
          "v_cndmask_b32 v%d, v%d, v%d, vcc" % (T + 2, T + 2, T + 3),
          "s_cmp_eq_u32 s%d, 1" % S_DOFF,
          "s_cselect_b64 vcc, -1, 0",
          "s_sub_u32 s%d, s%d, 3" % (S_X1, S_X1),
          "v_cndmask_b32 v%d, v%d, v%d, vcc" % (T + 1, T + 1, T + 2),
          "s_cmp_eq_u32 s%d, 1" % S_DOFF,
          "s_cselect_b32 s%d, s%d, 0" % (S_X1, S_X1),
          "s_sub_u32 s%d, 32, s%d" % (S_DOFF, S_DOFF),
          "s_lshl_b32 s%d, s%d, 13" % (S_X0, S_X0),
          "s_lshl_b32 s%d, s%d, 20" % (S_EVT, S_H),
          "s_add_u32 s%d, s%d, s%d" % (S_X0, S_X0, S_EVT),
          "v_lshlrev_b32 v%d, 14, v%d" % (T + 1, T + 1),
          "v_add_u32 v%d, s%d, v%d" % (T + 1, S_X0, T + 1),
          "v_mov_b32 v%d, 0x40000000" % (T + 2),
          "v_cmp_gt_i32 vcc, s%d, v%d" % (S_X1, T), "s_nop 1",
          "v_cndmask_b32 v%d, v%d, v%d, vcc" % (T + 1, T + 1, T + 2),
          "v_cmp_lt_i32 vcc, s%d, v%d" % (S_DOFF, T), "s_nop 1",
          "v_cndmask_b32 v%d, v%d, v%d, vcc" % (V_TAB, T + 1, T + 2)]
    return o

def rowmax(Sb, g):
    o = []
    T = V_T
    for qt in range(2):
        s = Sb + qt * 8; t = T + 2 * qt
        o.append("v_max3_f32 v%d, v%d, v%d, v%d" % (t, s, s + 1, V_M + g * 2 + qt))
        o.append("v_max3_f32 v%d, v%d, v%d, v%d" % (t + 1, s + 2, s + 3, s + 4))
        o.append("v_max3_f32 v%d, v%d, v%d, v%d" % (t, t, s + 5, s + 6))
        o.append("v_max3_f32 v%d, v%d, v%d, v%d" % (t, t, t + 1, s + 7))
    for sw in ("v_permlane32_swap_b32", "v_permlane16_swap_b32"):
        for qt in range(2): o.append("v_mov_b32 v%d, v%d" % (T + 2 * qt + 1, T + 2 * qt))
        o.append("s_nop 1")
        for qt in range(2): o.append("%s v%d, v%d" % (sw, T + 2 * qt, T + 2 * qt + 1))
        o.append("s_nop 0")
        for qt in range(2): o.append("v_max_f32 v%d, v%d, v%d" % (T + 2 * qt, T + 2 * qt, T + 2 * qt + 1))
    for qt in range(2):
        for i in range(8): o.append("v_sub_f32 v%d, v%d, v%d" % (Sb + qt * 8 + i, Sb + qt * 8 + i, T + 2 * qt))
        for r in range(4): o.append("v_sub_f32 v%d, 0, v%d" % (CIN + g * 8 + qt * 4 + r, T + 2 * qt))
    return o

def prefetch(A):
    A("s_mov_b32 s%d, 0" % S_TT)
    A("s_mov_b32 s%d, 0x10000" % S_SLOT)
    A("s_mov_b64 %s, 0" % sr(S_BAD, 2))
    A("s_mov_b32 s%d, 0" % S_SDONE)
    for i in range(3):
        d = dma()
        A(d[:3]); A("s_nop 0"); A(d[3:9]); A("s_nop 0"); A(d[9:])
        A(slot_adv())

def attention(k, w0_end=None):
    A = k.A; N = k.name
    A.label("att_w0")
    A(["s_waitcnt vmcnt(16) lgkmcnt(0)", "s_barrier"])
    A(rd(KF, 0, "k"))
    qd = Q(dma() + slot_adv(), cap=1)
    qz = Q(zero_o(1))
    step(A, qk("S", S0, zero=True), [qd, qz], pre={0: [("WAITLG", ("k", 0))], 8: [("WAITLG", ("k", 1))]}, vmgap=2)
    step(A, qk("L", S1, zero=True), [qd, qz], drain=[qd, qz], vmgap=2)
    A("s_cmp_lg_u32 s%d, 0" % S_GS)
    A("s_cbranch_scc1 w0_nomask")
    A(mask(S0))
    A.label("w0_nomask")
    A(rowmax(S0, 0))
    A(rowmax(S1, 1))
    m = sm1(S0, P0)
    for g in sorted(m):
        if m[g][0].startswith("v_cvt"): A("s_nop 0")
        A(m[g])
    if w0_end: A(w0_end)
    A("s_add_u32 s%d, s%d, 3" % (S_EVT, S_GS))
    A("s_cmp_lt_u32 s%d, 2" % S_GS)
    A("s_cbranch_scc1 dd_done")
    A.raw(".p2align 3")
    A.label("dd_loop")
    n = window(A, "D", "D", tail=["s_cmp_lg_u32 s%d, s%d" % (S_TT, S_EVT)])
    A("s_cbranch_scc1 dd_loop")
    A.label("dd_done")
    A("s_cmp_eq_u32 s%d, 0" % S_GS)
    A("s_cbranch_scc1 ds_win")
    window(A, "D", "D", mask_even=True, tail=["s_cmp_eq_u32 s%d, 35" % S_TT])
    A("s_cbranch_scc1 fin_d")
    A.label("ds_win")
    window(A, "D", "S", tail=["s_lshl_b32 s%d, s%d, 2" % (S_EVT, S_J), "s_add_u32 s%d, s%d, 8" % (S_EVT, S_EVT),
                              "s_min_u32 s%d, s%d, 35" % (S_EVT, S_EVT), "s_cmp_eq_u32 s%d, 3" % S_W])
    A("s_cbranch_scc1 ss_chk")
    A("s_nop 6")
    A(mask(S1))
    A.label("ss_chk")
    A("s_cmp_lg_u32 s%d, s%d" % (S_TT, S_EVT))
    A("s_cbranch_scc1 ss_loop")
    A("s_cmp_eq_u32 s%d, 35" % S_EVT)
    A("s_cbranch_scc1 fin_s")
    epilogue(A, "S")
    A("s_mov_b32 s%d, 1" % S_SDONE)
    A("s_mov_b32 s%d, 35" % S_EVT)
    A.raw(".p2align 3")
    A.label("ss_loop")
    n = window(A, "S", "S", tail=["s_cmp_lg_u32 s%d, s%d" % (S_TT, S_EVT)])
    print("SS leftover", n, file=sys.stderr)
    A("s_cbranch_scc1 ss_loop")
    A("s_branch ss_chk")
    A.label("fin_d")
    fin(A, k, "D")
    A("s_branch att_epi")
    A.label("fin_s")
    fin(A, k, "S")
    A.label("att_epi")
    k.stamp("a_end")
    A("s_cmp_lg_u32 s%d, 0" % S_SDONE)
    A("s_cbranch_scc1 att_epi_l")
    epilogue(A, "S")
    A.label("att_epi_l")
    A("s_nop 7")
    epilogue(A, "L")
    T = V_T
    A("s_cmp_lg_u64 %s, 0" % sr(S_BAD, 2))
    A("s_cselect_b32 s%d, 1, 0" % S_X0)
    if k.opts.get("forceredo"): A("s_mov_b32 s%d, 1" % S_X0)
    A("s_lshl_b32 s%d, s%d, 2" % (S_X1, S_W))
    A("s_add_u32 s%d, s%d, 0x20000" % (S_X1, S_X1))
    A("v_mov_b32 v%d, s%d" % (T, S_X0))
    A("v_mov_b32 v%d, s%d" % (T + 1, S_X1))
    A("v_mov_b32 v%d, 0x20000" % (T + 2))
    A("ds_write_b32 v%d, v%d" % (T + 1, T))
    A("s_waitcnt vmcnt(0) lgkmcnt(0)")
    A("s_barrier")
    A("ds_read_b128 %s, v%d" % (vr(T + 4, 4), T + 2))
    A("s_waitcnt lgkmcnt(0)")
    A("v_or3_b32 v%d, v%d, v%d, v%d" % (T, T + 4, T + 5, T + 6))
    A("v_or_b32 v%d, v%d, v%d" % (T, T, T + 7))
    A("s_nop 0")
    A("v_readfirstlane_b32 s%d, v%d" % (S_X0, T))
    A("s_nop 0")
    A("s_cmp_gt_u32 s%d, s%d" % (S_X0, S_REDO))
    A("s_cbranch_scc1 att_redo")

def redo(k):
    A = k.A
    A.label("att_redo")
    A("s_mov_b32 s%d, 1" % S_REDO)
    for g, sg in ((0, S_GS), (1, S_GL)):
        A("s_mov_b32 s%d, 0" % S_TT)
        A("s_lshl_b32 s%d, s%d, 20" % (S_X0, S_H))
        A.label("redo_loop%d" % g)
        A("s_add_u32 s%d, s%d, 0x1000" % (S_X1, S_X0))
        for f in range(8):
            A("buffer_load_dwordx4 %s, v%d, %s, s%d offen offset:%d sc1" % (ar(KF + 4 * f, 4), V_L16, sr(SRD_WS, 4), S_X1 if f >= 4 else S_X0, 1024 * (f & 3)))
        A("s_waitcnt vmcnt(0)")
        A(qk("SL"[g], S0, zero=True))
        A("s_nop 7")
        A("s_cmp_lg_u32 s%d, s%d" % (S_TT, sg))
        A("s_cbranch_scc1 redo_nm%d" % g)
        A(mask(S0))
        A.label("redo_nm%d" % g)
        for qt in range(2):
            m = V_M + g * 2 + qt
            for i in range(4):
                A("v_max3_f32 v%d, v%d, v%d, v%d" % (m, m, S0 + qt * 8 + 2 * i, S0 + qt * 8 + 2 * i + 1))
        A("s_add_u32 s%d, s%d, 0x4000" % (S_X0, S_X0))
        A("s_add_u32 s%d, s%d, 1" % (S_TT, S_TT))
        A("s_cmp_le_u32 s%d, s%d" % (S_TT, sg))
        A("s_cbranch_scc1 redo_loop%d" % g)
    prefetch(A)
    A(zero_a() + zero_o(0) + zero_p())
    A("s_branch att_w0")
```

```python
import sys, math, struct
KV_OFF = 0
CTX_OFF = 32 << 20
MISC_OFF = 52 << 20
KVF_OFF = MISC_OFF
CTXF_OFF = MISC_OFF + 4096
AUXF_OFF = MISC_OFF + 8192
RKEY_OFF = MISC_OFF + 12288
ZERO_BYTES = 20480
GATE_OFF = MISC_OFF + 65536
YP_OFF = MISC_OFF + (1 << 20)
WOF_OFF = 48 << 20
SPIN_MAX = 20000
DBG_OFF = 56 << 20
STAMP_OFF = 88 << 20
WS_SIZE = 96 << 20
MF = "v_mfma_f32_16x16x32_bf16"
QSCALE = math.log2(math.e) / math.sqrt(128.0)
def f32hex(x): return "0x%08x" % struct.unpack("<I", struct.pack("<f", x))[0]

S_W, S_H, S_J, S_GS, S_GL = 3, 4, 5, 6, 7
SRD_C, SRD_X, SRD_UK, SRD_UV, SRD_WQ, SRD_WS = 8, 12, 16, 20, 24, 28
S_KROW, S_QROW, S_XM = 32, 34, 36
S_WM, S_WOFF, S_KV = 40, 41, 42
S_SC = 44
S_LIM = 45
S_T0, S_T1, S_T2, S_T3, S_T4, S_T5 = 46, 47, 48, 49, 50, 51
S_TT, S_EVT, S_SLOT, S_W8K = 52, 53, 54, 55
SRD_DBG = 60
PTR = 64
MSK = 64
S_BAD = 72
S_4K, S_REDO, S_SDONE, S_CTXS, S_CTXL, S_DOFF, S_X0, S_X1 = 76, 77, 78, 79, 80, 81, 82, 83
STAMPS = [84, 86, 88, 90, 92, 94, 96, 98, 100, 56, 58, 38]
V_LANE, V_L16, V_OFFX, V_OFFW, V_WADDR, V_XADDR = 1, 2, 4, 8, 12, 16
XB = 65536
WF = 64
ACC = 128
QREG = 0
V_RD, V_DM, V_TAB, V_NEG, V_L16X, V_M = 3, 4, 5, 6, 7, 8
S0, S1, P0, P1, CIN, OREG, V_T = 16, 32, 48, 56, 64, 128, 96
KF, VF, LREG, ONES, ZERO = 64, 96, 128, 144, 148
def qfrag(rt, ds):
    return QREG + ((ds >> 1) * 8 + rt * 2 + (ds & 1)) * 4
def cvt8(t):
    return ["v_cvt_pk_bf16_f32 v%d, v%d, v%d" % (t + i, t + 2 * i, t + 2 * i + 1) for i in range(4)]
S_I0, S_I1 = 37, 43
SRD_WO, SRD_G, SRD_U, SRD_D, SRD_OUT = 8, 16, 20, 64, 16
S_PR, S_PG = 80, 82
S_F0 = 68
L_WO, L_MW, L_XS, L_HS = 0x20000, 0x24000, 0x8000, 0xA000
LOG2E = math.log2(math.e)
```

```python
import sys, math, struct
from asmlib import *
from sched import *

from defs import *

class K:
    def __init__(self, A, name, opts):
        self.A = A; self.name = name; self.opts = opts; self.nst = 0; self.stn = []
    def stamp(self, nm):
        o = self.opts
        if o.get("stamps") or o.get("cyc"):
            k = STAMPS[self.nst]; self.nst += 1; self.stn.append(nm)
            self.A("%s s[%d:%d]" % ("s_memrealtime" if o.get("stamps") else "s_memtime", k, k + 1))

def prologue(k):
    A = k.A
    A("s_cmp_ge_u32 s2, 256")
    A("s_cbranch_scc1 %s_end" % k.name)
    A("s_load_dwordx8 s[64:71], s[0:1], 0")
    A("s_load_dwordx2 s[72:73], s[0:1], 32")
    A("s_load_dwordx4 s[76:79], s[0:1], 104")
    A("s_load_dwordx2 s[%d:%d], s[0:1], 56" % (S_PR, S_PR + 1))
    A("s_load_dwordx2 s[%d:%d], s[0:1], 88" % (S_PG, S_PG + 1))
    A("v_lshrrev_b32 v26, 6, v0")
    A("v_and_b32 v1, 63, v0")
    A("v_readfirstlane_b32 s3, v26")
    A("s_and_b32 s46, s2, 7")
    A("s_lshr_b32 s47, s2, 3")
    A("s_lshl_b32 s4, s46, 2")
    A("s_and_b32 s48, s47, 3")
    A("s_add_u32 s4, s4, s48")
    A("s_lshr_b32 s5, s47, 2")
    A("v_lshrrev_b32 v27, 4, v1")
    A("v_lshrrev_b32 v28, 3, v1")
    A("v_lshl_add_u32 v19, v26, 5, v28")
    A("v_lshlrev_b32 v19, 13, v19")
    A("v_and_b32 v20, 1, v27")
    A("v_lshlrev_b32 v20, 1, v20")
    A("v_and_b32 v23, 7, v1")
    A("v_xor_b32 v21, v23, v20")
    for n in range(4):
        if n & 1:
            A("v_xor_b32 v22, 4, v21")
            A("v_lshl_add_u32 v22, v22, 4, v19")
        else:
            A("v_lshl_add_u32 v22, v21, 4, v19")
        A("v_add_u32 v%d, %d, v22" % (V_OFFW + n, (65536 - 1024) * n))
    A("v_lshlrev_b32 v19, 10, v28")
    A("v_xor_b32 v21, v23, v27")
    for n in range(4):
        if n & 1:
            A("v_xor_b32 v22, 4, v21")
            A("v_lshl_add_u32 v22, v22, 4, v19")
        else:
            A("v_lshl_add_u32 v22, v21, 4, v19")
        A("v_add_u32 v%d, %d, v22" % (V_OFFX + n, 7168 * n))
    A("s_lshl_b32 s%d, s3, 12" % S_WM)
    A("s_lshl_b32 s%d, s4, 8" % S_WOFF)
    A("s_mul_i32 s%d, s3, 24576" % S_XM)
    A("s_add_u32 s%d, s%d, %d" % (S_XM, S_XM, XB))
    A("s_lshl_b32 s%d, s5, 18" % S_KROW)
    A("s_lshl_b32 s46, s3, 16")
    A("s_add_u32 s%d, s%d, s46" % (S_KROW, S_KROW))
    A("s_add_u32 s%d, s%d, 32768" % (S_KROW + 1, S_KROW))
    A("s_waitcnt lgkmcnt(0)")
    srd(A, SRD_UK, PTR + 6, 4 << 20)
    srd(A, SRD_C, PTR + 2, 2 << 20)

def prologue2(k):
    A = k.A
    A("s_lshl_b32 s%d, s5, 2" % S_GS)
    A("s_add_u32 s%d, s%d, s3" % (S_GS, S_GS))
    A("s_sub_u32 s%d, 63, s%d" % (S_GL, S_GS))
    A("s_lshl_b32 s%d, s%d, 15" % (S_QROW, S_GS))
    A("s_lshl_b32 s%d, s%d, 15" % (S_QROW + 1, S_GL))
    A("s_lshl_b32 s46, s4, 6")
    A("s_lshl_b32 s47, s5, 3")
    A("s_add_u32 s46, s46, s47")
    A("s_lshl_b32 s47, s3, 1")
    A("s_add_u32 s46, s46, s47")
    A("s_lshl_b32 s%d, s46, 14" % S_KV)
    A("s_mov_b32 s%d, %s" % (S_SC, f32hex(QSCALE)))
    A("v_bfe_u32 v18, v1, 2, 2")
    A("v_lshl_add_u32 v19, v27, 3, v18")
    A("v_lshlrev_b32 v19, 7, v19")
    A("v_and_b32 v21, 3, v1")
    A("v_lshl_add_u32 v19, v21, 3, v19")
    A("v_lshrrev_b32 v18, 1, v18")
    A("v_add_u32 v18, v18, v20")
    for dt in range(4):
        A("v_xor_b32 v21, %d, v18" % dt)
        A("v_lshl_add_u32 v%d, v21, 5, v19" % (V_WADDR + dt))
    A("v_and_b32 v21, 15, v1")
    A("v_lshlrev_b32 v21, 7, v21")
    A("v_add_u32 v21, s%d, v21" % S_XM)
    A("v_bfe_u32 v23, v1, 1, 3")
    A("v_xor_b32 v23, v23, v27")
    A("v_lshl_add_u32 v%d, v23, 4, v21" % V_XADDR)
    A("v_xor_b32 v23, 4, v23")
    A("v_lshl_add_u32 v%d, v23, 4, v21" % (V_XADDR + 1))
    A("v_lshlrev_b32 v%d, 4, v1" % V_L16)
    srd(A, SRD_UV, PTR + 8, 4 << 20)
    srd(A, SRD_X, PTR + 0, 2 << 20)
    srd(A, SRD_WQ, PTR + 4, 4 << 20)
    srd(A, SRD_WS, PTR + 14, WS_SIZE)
    srd(A, SRD_DBG, PTR + 12, 256)

def w_dma(gam):
    sig = gam >> 2
    sw = (SRD_UK, SRD_UV, SRD_WQ)[sig >> 1]
    out = ["s_add_u32 m0, s%d, %d" % (S_WM, (gam & 3) * 16384),
           "s_add_u32 s%d, s%d, %d" % (S_T0, S_WOFF, (gam & 3) * 128 * 8192 + (sig & 1) * 128)]
    for n in range(4):
        out.append(("buffer_load_dwordx4 v%d, %s, s%d offen offset:%d lds" % (V_OFFW + n, sr(sw, 4), S_T0, 1024 * n), ("w", gam)))
    return out

def x_dma(ph, c):
    sx, rows = (SRD_C, S_KROW) if ph == 0 else (SRD_X, S_QROW)
    out = []
    for hf in range(2):
        out.append("s_add_u32 m0, s%d, %d" % (S_XM, (c % 3) * 8192 + hf * 4096))
        out.append("s_add_u32 s%d, s%d, %d" % (S_T0, rows + hf, 128 * c))
        for n in range(4):
            out.append(("buffer_load_dwordx4 v%d, %s, s%d offen offset:%d lds" % (V_OFFX + n, sr(sx, 4), S_T0, 1024 * n), ("x", ph, c)))
    return out

def x_reads(c):
    return ["ds_read_b128 %s, v%d offset:%d" % (ar(16 * (2 * c + ksl) + 4 * rt, 4), V_XADDR + ksl, (c % 3) * 8192 + 2048 * rt)
            for ksl in range(2) for rt in range(4)]

def w_reads(kap):
    gam = kap >> 2
    off = (gam & 3) * 16384 + (kap & 3) * 4096
    wf = WF + 16 * (kap & 1)
    return ["ds_read_b64_tr_b16 %s, v%d offset:%d" % (vr(wf + 4 * dt + 2 * q, 2), V_WADDR + dt, off + 512 * q)
            for dt in range(4) for q in range(2)]

def acc_tile(sig, rt, dt):
    base = ACC + 64 * (sig & 1)
    if sig >> 1 == 1:
        return base + (((rt >> 1) * 4 + dt) * 2 + (rt & 1)) * 4
    return base + rt * 16 + dt * 4

def epi(sig, sc1):
    out = []
    base = ACC + 64 * (sig & 1)
    if sig < 2:
        for kbl in range(2):
            out.append("s_add_u32 s%d, s%d, %d" % (S_T1, S_KV, kbl * 16384 + sig * 4096))
            for dsl in range(2):
                for kt in range(2):
                    t = base + (kbl * 2 + kt) * 16 + dsl * 8
                    for i in range(8):
                        out.append("v_mul_f32 v%d, s%d, v%d" % (t + i, S_SC, t + i))
                    out += cvt8(t)
                    out.append(("buffer_store_dwordx4 %s, v%d, %s, s%d offen offset:%d%s" % (vr(t, 4), V_L16, sr(SRD_WS, 4), S_T1, (dsl * 2 + kt) * 1024, sc1), ("st", sig)))
    elif sig < 4:
        for kbl in range(2):
            out.append("s_add_u32 s%d, s%d, %d" % (S_T1, S_KV, kbl * 16384 + 8192 + (sig & 1) * 4096))
            for dt in range(4):
                t = base + (kbl * 4 + dt) * 8
                out += cvt8(t)
                out.append(("buffer_store_dwordx4 %s, v%d, %s, s%d offen offset:%d%s" % (vr(t, 4), V_L16, sr(SRD_WS, 4), S_T1, dt * 1024, sc1), ("st", sig)))
    else:
        for rt in range(4):
            for dsl in range(2):
                t = base + rt * 16 + dsl * 8
                out += cvt8(t)
                for i in range(4):
                    out.append("v_accvgpr_write_b32 a%d, v%d" % (qfrag(rt, (sig & 1) * 2 + dsl) + i, t + i))
    return out

def frontend(k, hooks=None):
    A = k.A; opts = k.opts
    hooks = hooks or {}
    sc1 = "" if opts.get("nosc1") else " sc1"
    A(w_dma(0))
    A(x_dma(0, 0))
    prologue2(k)
    A(x_dma(0, 1))
    A(w_dma(1))
    A(x_dma(0, 2))
    A(w_dma(2))
    A(w_dma(3))
    if "pro" in hooks: hooks["pro"](A)
    A(("WAITVM", ("x", 0, 0)))
    A("s_barrier")
    k.stamp("bar0")
    A(x_reads(0))
    A(w_reads(0))
    A("s_waitcnt lgkmcnt(8)")
    A(x_dma(0, 3))
    qm = Q(cap=2, first=1)
    qe = Q(cap=2, first=4)
    xr = {}; xd = {}
    for c in range(1, 8): xr[2 * c - 2] = (0, c)
    for c in range(4, 8): xd[2 * (c - 3) - 1] = (0, c)
    for c, kp in enumerate((18, 26, 34, 51, 54, 57, 61, 65)): xd[kp] = (1, c)
    for c, kp in enumerate((50, 52, 54, 60, 62, 64, 70, 72)): xr[kp] = (1, c)
    for kap in range(96):
        sig, ks = kap >> 4, kap & 15
        if ks == 0 and sig > 0:
            if opts.get("festamps"): k.stamp("s%d" % (sig - 1))
            assert not qe.items
        wf = WF + 16 * (kap & 1)
        mf = []
        for dt in range(4):
            for rt in range(4):
                acc = vr(acc_tile(sig, rt, dt), 4)
                c = "0" if ks == 0 else acc
                a, b = vr(wf + 4 * dt, 4), ar(16 * ks + 4 * rt, 4)
                if sig >> 1 == 1: a, b = b, a
                mf.append("%s %s, %s, %s, %s" % (MF, acc, a, b, c))
        pre = []
        tags = []
        if kap in xr: tags.append(("x",) + xr[kap])
        bar = (kap & 3) == 3 and kap < 95
        if bar: tags.append(("w", (kap >> 2) + 1))
        tags += hooks.get(("tag", kap), [])
        if opts.get("nowdma"): tags = [t for t in tags if t[0] != "w" or t[1] < 4]
        if opts.get("nox2"): tags = [t for t in tags if t[0] != "x" or t[1] == 0]
        for t in tags: assert not any(isinstance(x, tuple) and x[1] == t for x in qm.items + qe.items), (kap, t)
        if tags:
            t = min(tags, key=lambda t: A.vm_after(t))
            pre.append(("WAITVM", t, "lgkmcnt(0)"))
        else:
            pre.append("s_waitcnt lgkmcnt(0)")
        if bar and not opts.get("nobar"): pre.append("s_barrier")
        pre += hooks.get(("pre", kap), [])
        qr = Q(w_reads(kap + 1) if kap < 95 else [], cap=2)
        if kap in xr: qr.add(x_reads(xr[kap][1]))
        if bar and (kap >> 2) + 4 < 24 and not opts.get("nowdma"): qm.add(w_dma((kap >> 2) + 4))
        if kap in xd and not (opts.get("nox2") and xd[kap][0] == 1): qm.add(x_dma(*xd[kap]))
        qm.add(hooks.get(("qm", kap), []))
        if ks == (3 if sig == 5 else 0) and sig > 0:
            e = epi(sig - 1, sc1)
            if opts.get("nostore"): e = [x for x in e if not isinstance(x, tuple)]
            if opts.get("noepi"): e = []
            qe.add(e)
        qs = [qr, qm, qe]
        if kap in hooks: qs += hooks[kap](k)
        vg = opts.get("vg0", 2) if kap < 12 else opts.get("vg", 3)
        left = step(A, mf, qs, pre={0: pre}, drain=[qr], vmgap=vg)
        if left: print("; kstep", kap, "leftover", left, file=sys.stderr)
    if opts.get("festamps"): k.stamp("s5")
    assert not qm.items and not qe.items
    A("s_nop 7")
    A(epi(5, sc1))

def dump_stamps(k):
    A = k.A
    regs_ = STAMPS[:k.nst]
    A("s_waitcnt lgkmcnt(0)")
    A("s_lshl_b32 s46, s2, 9")
    A("s_lshl_b32 s47, s3, 7")
    A("s_add_u32 s46, s46, s47")
    A("s_add_u32 s46, s46, %d" % STAMP_OFF)
    for i, r in enumerate(regs_):
        A("v_mov_b32 v%d, s%d" % (32 + 2 * i, r))
        A("v_mov_b32 v%d, s%d" % (33 + 2 * i, r + 1))
    A("v_mov_b32 v31, 0")
    A("s_mov_b64 exec, 1")
    for i in range((len(regs_) + 1) // 2):
        A("buffer_store_dwordx4 %s, v31, %s, s46 offen offset:%d" % (vr(32 + 4 * i, 4), sr(SRD_WS, 4), 16 * i))
    A("s_mov_b64 exec, -1")

def kernel(A, name, opts):
    k = K(A, name, opts)
    kernel_header(A, name)
    k.stamp("start")
    prologue(k)
    frontend(k)
    if opts.get("dumpq"):
        A("s_lshl_b32 s46, s2, 2")
        A("s_add_u32 s46, s46, s3")
        A("s_lshl_b32 s46, s46, 14")
        A("s_add_u32 s46, s46, %d" % DBG_OFF)
        for rt in range(4):
            A("s_add_u32 s47, s46, %d" % (rt * 4096))
            for ds in range(4):
                A("buffer_store_dwordx4 %s, v%d, %s, s47 offen offset:%d" % (ar(qfrag(rt, ds), 4), V_L16, sr(SRD_WS, 4), ds * 1024))
    if opts.get("stamps") or opts.get("cyc"):
        A("s_waitcnt vmcnt(0)")
        k.stamp("end")
        dump_stamps(k)
    A.label("%s_end" % name)
    A("s_endpgm")
    return k

HEAD = open("gated_mix__compressed_kv_cla__moe_arch_mod__prompt.s.ref").read().split("; Override launch")[0]
def build(out, opts):
    A = Asm()
    A.raw('.amdgcn_target "amdgcn-amd-amdhsa--gfx950"')
    A.raw(".text")
    name = "gated_mix__compressed_kv_cla__moe_arch_mod__prompt_kernel"
    k = kernel(A, name, opts)
    errs, n = check(A)
    for e in errs: print(e, file=sys.stderr)
    print("instructions:", n, "hazards:", len(errs), "maxout:", A.maxout, file=sys.stderr)
    l = "; @launch kernel=%s grid=(256,1,1) block=(256,1,1) lds=163840\n; stamps: %s" % (name, " ".join(k.stn))
    open(out, "w").write(HEAD + l + "\n" + A.text() + '.section .rodata,"a"\n' + kernel_desc(name, 512, 256))
if __name__ == "__main__":
    opts = {k.split('=')[0]: (int(k.split('=')[1]) if '=' in k else True) for k in sys.argv[2:]}
    build(sys.argv[1], opts)
```

```python
from asmlib import *
class Q:
    def __init__(self, items=None, cap=2, first=0, period=0):
        self.items = list(items or []); self.cap = cap; self.first = first
        self.period = period; self.cool = 0
    def add(self, items): self.items += list(items)
    def __len__(self): return len(self.items)

def cost(ins):
    s = ins[0] if isinstance(ins, tuple) else ins
    if isinstance(ins, list): return sum(cost(x) for x in ins)
    if s in ("WAITVM", "WAITLG"): return 1
    if s.startswith(("v_exp", "v_rcp", "v_log")): return 2
    return 1

def isvm(x):
    if isinstance(x, list): return any(isvm(y) for y in x)
    s = x[0] if isinstance(x, tuple) else x
    return s.startswith(("buffer_", "global_"))
vmshared = [0]
def step(A, mfmas, queues, pre=None, post=None, cap=2, drain=(), vmgap=1):
    for i, m in enumerate(mfmas):
        if pre and i in pre: A(pre[i])
        A(m)
        room = cap
        if vmshared[0] > 0: vmshared[0] -= 1
        if pre and (i + 1) in pre: room -= sum(cost(x) for x in pre[i + 1])
        if post and i in post:
            A(post[i]); room -= sum(cost(x) for x in post[i])
        for q in queues:
            if q.cool > 0: q.cool -= 1
            if i < q.first: continue
            used = 0
            while q.items:
                c = cost(q.items[0])
                vm = isvm(q.items[0])
                if vm and (q.cool > 0 or vmshared[0] > 0): break
                if c > cap and room == cap and used == 0: pass
                elif room < c or used + c > q.cap: break
                A(q.items.pop(0)); room -= c; used += c
                if vm: q.cool = q.period; vmshared[0] = vmgap
    left = 0
    for q in drain:
        left += len(q.items)
        for x in q.items: A(x)
        q.items = []
    return left
```

```python
from asmlib import *
from sched import *
from defs import *

def srdl(d, nbytes):
    return ["s_and_b32 s%d, s%d, 0xffff" % (d + 1, d + 1), "s_mov_b32 s%d, 0x%x" % (d + 2, nbytes), "s_mov_b32 s%d, 0x00020000" % (d + 3)]

DPP = ["row_shr:1 row_mask:0xf bank_mask:0xf bound_ctrl:0", "row_shr:2 row_mask:0xf bank_mask:0xf bound_ctrl:0",
       "row_shr:4 row_mask:0xf bank_mask:0xf bound_ctrl:0", "row_shr:8 row_mask:0xf bank_mask:0xf bound_ctrl:0",
       "row_bcast:15 row_mask:0xa bank_mask:0xf", "row_bcast:31 row_mask:0xc bank_mask:0xf"]

R0 = 32
def router_loads():
    o = ["s_lshl_b32 s%d, s2, 13" % S_T2, "s_lshl_b32 s%d, s%d, 11" % (S_T3, S_W), "s_add_u32 s%d, s%d, s%d" % (S_T2, S_T2, S_T3)]
    o.append(("buffer_load_dwordx4 %s, v%d, %s, s%d offen" % (vr(R0, 4), V_L16, sr(SRD_X, 4), S_T2), "rt"))
    o.append(("buffer_load_dwordx4 %s, v%d, %s, s%d offen offset:1024" % (vr(R0 + 4, 4), V_L16, sr(SRD_X, 4), S_T2), "rt"))
    o.append(("global_load_dwordx4 %s, v%d, %s" % (vr(R0 + 8, 4), V_L16, sr(S_PR, 2)), "rt"))
    o.append(("global_load_dwordx4 %s, v%d, %s" % (vr(R0 + 12, 4), V_L16, sr(S_PG, 2)), "rt"))
    return o
def router_calc():
    o = [("WAITVM", "rt")]
    a = R0 + 16
    for i in range(4):
        for wv in range(2):
            for row in range(2):
                d = a + wv * 2 + row
                o.append("v_dot2_f32_bf16 v%d, v%d, v%d, %s" % (d, R0 + 4 * row + i, R0 + 8 + 4 * wv + i, "v%d" % d if i else "0"))
    for m in DPP:
        for q in range(4): o.append("v_add_f32_dpp v%d, v%d, v%d %s" % (a + q, a + q, a + q, m))
    o += ["s_lshl_b32 s%d, s2, 3" % S_T4, "s_lshl_b32 s%d, s%d, 1" % (S_T5, S_W), "s_add_u32 s%d, s%d, s%d" % (S_T4, S_T4, S_T5),
          "s_sub_u32 s%d, 2047, s%d" % (S_T4, S_T4), "s_sub_u32 s%d, s%d, 1" % (S_T5, S_T4)]
    for row in range(2):
        t = a + 4 + row
        o += ["v_ashrrev_i32 v%d, 31, v%d" % (t, a + row), "v_or_b32 v%d, 0x80000000, v%d" % (t, t), "v_xor_b32 v%d, v%d, v%d" % (a + row, a + row, t),
              "v_and_b32 v%d, 0xfffff800, v%d" % (a + row, a + row), "v_or_b32 v%d, s%d, v%d" % (a + row, S_T4 + row, a + row)]
    for row in range(2): o.append("v_mul_f32 v%d, %s, v%d" % (a + 2 + row, f32hex(-LOG2E), a + 2 + row))
    for row in range(2): o.append("v_exp_f32 v%d, v%d" % (a + 2 + row, a + 2 + row))
    for row in range(2): o.append("v_add_f32 v%d, 1.0, v%d" % (a + 2 + row, a + 2 + row))
    for row in range(2): o.append("v_rcp_f32 v%d, v%d" % (a + 2 + row, a + 2 + row))
    return o
def router_store():
    a = R0 + 16
    return ["s_lshl_b32 s%d, s2, 5" % S_T2, "s_lshl_b32 s%d, s%d, 3" % (S_T3, S_W), "s_add_u32 s%d, s%d, s%d" % (S_T2, S_T2, S_T3),
            "s_add_u32 s%d, s%d, 0x%x" % (S_T3, S_T2, GATE_OFF), "s_add_u32 s%d, s%d, 0x%x" % (S_T2, S_T2, RKEY_OFF),
            "s_lshl_b64 exec, 1, 63",
            "buffer_store_dwordx2 %s, off, %s, s%d sc1" % (vr(a, 2), sr(SRD_WS, 4), S_T2),
            "buffer_store_dwordx2 %s, off, %s, s%d sc1" % (vr(a + 2, 2), sr(SRD_WS, 4), S_T3),
            "s_mov_b64 exec, -1"]

def aux_ptrs():
    return ["s_load_dwordx2 %s, s[0:1], 40" % sr(SRD_WO, 2), "s_load_dwordx2 %s, s[0:1], 64" % sr(SRD_G, 2),
            "s_load_dwordx2 %s, s[0:1], 72" % sr(SRD_U, 2), "s_load_dwordx2 %s, s[0:1], 80" % sr(SRD_D, 2)]
V_WD = 24
V_KEY = 96
def aux_loads():
    o = srdl(SRD_WO, 4 << 20) + srdl(SRD_G, 512 * 1792 * 2) + srdl(SRD_U, 512 * 1792 * 2) + srdl(SRD_D, 512 * 1792 * 2)
    o += ["v_lshrrev_b32 v20, 3, v%d" % V_LANE, "v_lshlrev_b32 v20, 10, v20", "v_and_b32 v21, 7, v%d" % V_LANE, "v_lshl_add_u32 v20, v21, 4, v20",
          "s_lshr_b32 s%d, s2, 1" % S_T2, "s_lshl_b32 s%d, s%d, 15" % (S_T2, S_T2), "s_and_b32 s%d, s2, 1" % S_T3, "s_lshl_b32 s%d, s%d, 9" % (S_T3, S_T3),
          "s_add_u32 s%d, s%d, s%d" % (S_T2, S_T2, S_T3), "s_lshl_b32 s%d, s%d, 7" % (S_T3, S_W), "s_add_u32 s%d, s%d, s%d" % (S_T2, S_T2, S_T3)]
    for n in range(4):
        o.append(["s_add_u32 m0, s%d, %d" % (S_WM, L_WO + 1024 * n), "s_add_u32 s%d, s%d, %d" % (S_T3, S_T2, 8192 * n),
                  ("buffer_load_dwordx4 v20, %s, s%d offen lds" % (sr(SRD_WO, 4), S_T3), "aux")])
    o += ["s_lshr_b32 s%d, s2, 6" % S_T2, "s_lshl_b32 s%d, s%d, 3" % (S_T2, S_T2), "s_and_b32 s%d, s2, 7" % S_T3, "s_add_u32 s%d, s%d, s%d" % (S_T2, S_T2, S_T3),
          "s_lshl_b32 s%d, s%d, 3" % (S_T2, S_T2), "s_bfe_u32 s%d, s2, 0x30003" % S_T3, "s_add_u32 s%d, s%d, s%d" % (S_T2, S_T2, S_T3),
          "s_lshl_b32 s%d, s%d, 4" % (S_F0, S_T2),
          "v_mul_u32_u24 v21, 3584, v%d" % V_LANE,
          "s_mul_i32 s%d, s%d, %d" % (S_T2, S_W, 128 * 3584), "s_add_u32 s%d, s%d, s%d" % (S_T2, S_T2, S_F0),
          "s_lshl_b32 s%d, s%d, 11" % (S_T4, S_W)]
    for mi, sd in enumerate((SRD_G, SRD_U)):
        for n in range(2):
            o.append(["s_add_u32 m0, s%d, %d" % (S_T4, L_MW + 8192 * mi + 1024 * n), "s_add_u32 s%d, s%d, %d" % (S_T3, S_T2, 64 * 3584 * n),
                      ("buffer_load_dwordx4 v21, %s, s%d offen lds" % (sr(sd, 4), S_T3), "aux")])
    o += ["v_lshlrev_b32 v22, 2, v%d" % V_LANE, "s_lshl_b32 s%d, s%d, 9" % (S_T2, S_F0), "s_lshl_b32 s%d, s%d, 8" % (S_T3, S_W),
          "s_add_u32 s%d, s%d, s%d" % (S_T2, S_T2, S_T3), "v_add_u32 v22, s%d, v22" % S_T2, "v_add_u32 v23, 0x1000, v22"]
    for c in range(8):
        o.append(("buffer_load_dword v%d, v%d, %s, 0 offen offset:%d" % (V_WD + c, 22 + (c >> 2), sr(SRD_D, 4), 1024 * (c & 3)), "aux"))
    o.append("s_mov_b32 s%d, s%d" % (S_I1, S_F0))
    return o

def key_loads(tag="key"):
    o = []
    for hf in range(2):
        o.append("s_mov_b32 s%d, 0x%x" % (S_T4, RKEY_OFF + 4096 * hf))
        for n in range(4):
            o.append(("buffer_load_dwordx4 %s, v%d, %s, s%d offen offset:%d sc1" % (vr(V_KEY + 16 * hf + 4 * n, 4), V_L16, sr(SRD_WS, 4), S_T4, 1024 * n), tag))
    return o
def key_min(t):
    o = ["v_min3_u32 v%d, v%d, v%d, v%d" % (t, V_KEY, V_KEY + 1, V_KEY + 2)]
    for i in range(3, 31, 2): o.append("v_min3_u32 v%d, v%d, v%d, v%d" % (t, t, V_KEY + i, V_KEY + i + 1))
    o.append("v_min_u32 v%d, v%d, v%d" % (t, t, V_KEY + 31))
    return o
def top2(t, s0, s1):
    o = ["v_max_u32 v%d, v%d, v%d" % (t, V_KEY, V_KEY + 1), "v_min_u32 v%d, v%d, v%d" % (t + 1, V_KEY, V_KEY + 1)]
    for i in range(2, 32):
        o.append("v_med3_u32 v%d, v%d, v%d, v%d" % (t + 1, t, t + 1, V_KEY + i))
        o.append("v_max_u32 v%d, v%d, v%d" % (t, t, V_KEY + i))
    o.append("v_mov_b32 v%d, v%d" % (t + 2, t))
    for m in DPP: o += ["s_nop 1", "v_max_u32_dpp v%d, v%d, v%d %s" % (t + 2, t + 2, t + 2, m)]
    o += ["s_nop 0", "v_readlane_b32 s%d, v%d, 63" % (s0, t + 2), "s_nop 1",
          "v_cmp_eq_u32 vcc, s%d, v%d" % (s0, t), "s_nop 1", "v_cndmask_b32 v%d, v%d, v%d, vcc" % (t + 2, t, t + 1)]
    for m in DPP: o += ["s_nop 1", "v_max_u32_dpp v%d, v%d, v%d %s" % (t + 2, t + 2, t + 2, m)]
    o += ["s_nop 0", "v_readlane_b32 s%d, v%d, 63" % (s1, t + 2), "s_nop 0"]
    return o

def wo_xpose(A, T):
    A("v_lshrrev_b32 v%d, 2, v%d" % (T, V_LANE))
    A("v_lshlrev_b32 v%d, 7, v%d" % (T, T))
    A("v_and_b32 v%d, 3, v%d" % (T + 1, V_LANE))
    A("v_lshl_add_u32 v%d, v%d, 3, v%d" % (T, T + 1, T))
    A("v_add_u32 v%d, s%d, v%d" % (T, S_WM, T))
    A("v_add_u32 v%d, 0x%x, v%d" % (T, L_WO, T))
    for nt in range(4):
        for q in range(2):
            A("ds_read_b64_tr_b16 %s, v%d offset:%d" % (vr(T + 4 + 4 * nt + 2 * q, 2), T, 32 * nt + 2048 * q))
    A("s_and_b32 s%d, s2, 1" % S_T2)
    A("s_lshl_b32 s%d, s%d, 2" % (S_T2, S_T2))
    A("s_add_u32 s%d, s%d, s%d" % (S_T2, S_T2, S_W))
    A("s_lshl_b32 s%d, s%d, 7" % (S_T2, S_T2))
    A("s_lshr_b32 s%d, s2, 1" % S_T3)
    A("s_add_u32 s%d, s%d, s%d" % (S_T2, S_T2, S_T3))
    A("s_lshl_b32 s%d, s%d, 12" % (S_T2, S_T2))
    A("s_add_u32 s%d, s%d, 0x%x" % (S_T2, S_T2, WOF_OFF))
    A("s_waitcnt lgkmcnt(0)")
    for nt in range(4):
        A("buffer_store_dwordx4 %s, v%d, %s, s%d offen offset:%d sc1" % (vr(T + 4 + 4 * nt, 4), V_L16, sr(SRD_WS, 4), S_T2, 1024 * nt))

def xsel_dma(A):
    A("s_lshl_b32 s%d, s%d, 11" % (S_T2, S_W))
    for i in range(2):
        A("s_andn2_b32 s%d, 0x7ff, s%d" % (S_T3, S_T4 + i))
        A("s_lshl_b32 s%d, s%d, 10" % (S_T3, S_T3))
        A("s_add_u32 m0, s%d, %d" % (S_T2, L_XS + 1024 * i))
        A("s_nop 0")
        A(("buffer_load_dwordx4 v%d, %s, s%d offen lds" % (V_L16, sr(SRD_X, 4), S_T3), "xs"))

def mod(A, T, F):
    A("v_lshrrev_b32 v%d, 4, v%d" % (T, V_LANE))
    A("v_bfe_u32 v%d, v%d, 2, 2" % (T + 1, V_LANE))
    A("v_lshl_add_u32 v%d, v%d, 3, v%d" % (T + 1, T, T + 1))
    A("v_lshlrev_b32 v%d, 4, v%d" % (T + 1, T + 1))
    A("v_and_b32 v%d, 1, v%d" % (T + 2, V_LANE))
    A("v_lshl_add_u32 v%d, v%d, 3, v%d" % (T + 1, T + 2, T + 1))
    A("v_bfe_u32 v%d, v%d, 1, 1" % (T + 3, V_LANE))
    A("v_lshl_add_u32 v%d, v%d, 13, v%d" % (T + 1, T + 3, T + 1))
    A("v_add_u32 v%d, 0x%x, v%d" % (T + 1, L_MW, T + 1))
    for ks in range(16):
        for q in range(2):
            A("ds_read_b64_tr_b16 %s, v%d offset:%d" % (vr(F + 4 * ks + 2 * q, 2), T + 1, 512 * ks + 64 * q))
    A("v_lshlrev_b32 v%d, 4, v%d" % (T + 3, T))
    A("v_lshl_add_u32 v%d, v%d, 10, v%d" % (T + 3, T + 2, T + 3))
    A("s_lshl_b32 s%d, s%d, 11" % (S_T2, S_W))
    A("s_add_u32 s%d, s%d, 0x%x" % (S_T2, S_T2, L_XS))
    A("v_add_u32 v%d, s%d, v%d" % (T + 3, S_T2, T + 3))
    A("v_mov_b32 v%d, s%d" % (T + 4, S_T4))
    A("v_mov_b32 v%d, s%d" % (T + 5, S_T5))
    A("v_cmp_eq_u32 vcc, 1, v%d" % (T + 2))
    A("s_andn2_b32 s%d, 0x7ff, s%d" % (S_I0, S_T4))
    A("s_nop 0")
    A("v_cndmask_b32 v%d, v%d, v%d, vcc" % (T + 4, T + 4, T + 5))
    A("v_ashrrev_i32 v%d, 31, v%d" % (T + 5, T + 4))
    A("v_not_b32 v%d, v%d" % (T + 5, T + 5))
    A("v_or_b32 v%d, 0x80000000, v%d" % (T + 5, T + 5))
    A("v_xor_b32 v%d, v%d, v%d" % (T + 4, T + 4, T + 5))
    A("v_mul_f32 v%d, %s, v%d" % (T + 4, f32hex(-LOG2E), T + 4))
    A("v_exp_f32 v%d, v%d" % (T + 4, T + 4))
    A(("WAITVM", "xs"))
    A("v_add_f32 v%d, 1.0, v%d" % (T + 4, T + 4))
    for ks in range(16):
        A("ds_read_b128 %s, v%d offset:%d" % (vr(F + 64 + 4 * ks, 4), T + 3, 64 * ks))
    A("v_rcp_f32 v%d, v%d" % (T + 4, T + 4))
    D = T + 8
    for ks in range(16):
        if ks % 4 == 0: A("s_waitcnt lgkmcnt(%d)" % (12 - ks))
        d = vr(D + 4 * (ks & 1), 4)
        A("%s %s, %s, %s, %s" % (MF, d, vr(F + 4 * ks, 4), vr(F + 64 + 4 * ks, 4), d if ks > 1 else "0"))
    A("s_nop 7")
    for r in range(4): A("v_add_f32 v%d, v%d, v%d" % (D + r, D + r, D + 4 + r))
    for c in range(8):
        A("v_lshlrev_b32 v%d, 16, v%d" % (F + 2 * c, V_WD + c))
        A("v_and_b32 v%d, 0xffff0000, v%d" % (F + 2 * c + 1, V_WD + c))
    for r in range(4): A("v_mov_b32 v%d, v%d" % (D + 4 + r, D + r))
    A("s_nop 1")
    for r in range(4): A("v_permlane32_swap_b32 v%d, v%d" % (D + r, D + 4 + r))
    G = F + 16
    for r in range(4): A("v_mul_f32 v%d, %s, v%d" % (G + r, f32hex(-LOG2E), D + r))
    for r in range(4): A("v_exp_f32 v%d, v%d" % (G + r, G + r))
    for r in range(4): A("v_mul_f32 v%d, v%d, v%d" % (D + r, D + r, D + 4 + r))
    for r in range(4): A("v_add_f32 v%d, 1.0, v%d" % (G + r, G + r))
    for r in range(4): A("v_rcp_f32 v%d, v%d" % (G + r, G + r))
    for r in range(4): A("v_mul_f32 v%d, v%d, v%d" % (D + r, D + r, T + 4))
    for r in range(4): A("v_mul_f32 v%d, v%d, v%d" % (D + r, D + r, G + r))
    A("v_and_b32 v%d, 1, v%d" % (T, T))
    A("v_lshlrev_b32 v%d, 4, v%d" % (T, T))
    A("v_lshl_add_u32 v%d, v%d, 5, v%d" % (T, T + 2, T))
    A("s_lshl_b32 s%d, s%d, 6" % (S_T2, S_W))
    A("s_add_u32 s%d, s%d, 0x%x" % (S_T2, S_T2, L_HS))
    A("v_add_u32 v%d, s%d, v%d" % (T, S_T2, T))
    A("v_mov_b32 v%d, s%d" % (T + 1, S_T2))
    A("ds_write_b128 v%d, %s" % (T, vr(D, 4)))
    A("s_waitcnt lgkmcnt(0)")
    H = F + 32
    for i in range(4): A("ds_read_b128 %s, v%d offset:%d" % (vr(H + 4 * i, 4), T + 1, 16 * i))
    A("v_lshrrev_b32 v%d, 5, v%d" % (T, V_LANE))
    A("v_mul_u32_u24 v%d, %d, v%d" % (T, 224 * 256, T))
    A("v_and_b32 v%d, 31, v%d" % (T + 1, V_LANE))
    A("v_lshl_add_u32 v%d, v%d, 3, v%d" % (T, T + 1, T))
    A("s_mul_i32 s%d, s%d, %d" % (S_T2, S_W, 2 * 224 * 256))
    A("s_lshl_b32 s%d, s%d, 4" % (S_T3, S_I1))
    A("s_add_u32 s%d, s%d, s%d" % (S_T2, S_T2, S_T3))
    A("s_add_u32 s%d, s%d, 0x%x" % (S_T2, S_T2, YP_OFF))
    A("s_add_u32 s%d, s%d, 0x%x" % (S_T3, S_T2, 8 * 224 * 256))
    A("s_waitcnt lgkmcnt(0)")
    for c in range(8):
        for tok in range(2):
            for e in range(2):
                y = D + tok * 2 + e
                if c == 0: A("v_mul_f32 v%d, v%d, v%d" % (y, H + tok * 8, F + e))
                else: A("v_fmac_f32 v%d, v%d, v%d" % (y, H + tok * 8 + c, F + 2 * c + e))
    A("s_cmp_ge_u32 s%d, %d" % (S_I1, 3584))
    A("s_cbranch_scc1 mod_nost")
    A(("RAW", ["buffer_store_dwordx2 %s, v%d, %s, s%d offen sc1" % (vr(D + 2 * tok, 2), T, sr(SRD_WS, 4), S_T2 + tok) for tok in range(2)]))
    A.label("mod_nost")
    A("s_andn2_b32 s%d, 0x7ff, s%d" % (S_I1, S_T5))

S_A, S_NT, S_CB, S_WB = 32, 33, 34, 35
PACC = 192
CR, CRN = 16, 11
RSTR = 272
def p3_head(i, sd, sb):
    return ["s_add_u32 s%d, s%d, %d" % (sd, S_NT, i), "s_and_b32 s%d, s%d, 7" % (sd, sd), "s_lshl_b32 s%d, s%d, 14" % (sd, sd), "s_add_u32 s%d, s%d, s%d" % (sd, sd, sb)]
VO = 4
def p3_w(ks):
    o = p3_head(ks >> 2, S_T0, S_WB) if ks % 4 == 0 else []
    for nt in range(4):
        o.append(("buffer_load_dwordx4 %s, v%d, %s, s%d offen offset:%d sc1" % (ar((ks & 15) * 16 + 4 * nt, 4), VO + (ks & 3), sr(SRD_WS, 4), S_T0, 1024 * nt), ("pw", ks)))
    return o
def p3_c(ks):
    o = p3_head(ks >> 2, S_T1, S_CB) if ks % 4 == 0 else []
    for tl in range(4):
        o.append(("buffer_load_dwordx4 %s, v%d, %s, s%d offen offset:%d sc1" % (vr(CR + (ks % CRN) * 16 + 4 * tl, 4), VO + (ks & 3), sr(SRD_WS, 4), S_T1, 1024 * tl), ("pc", ks)))
    return o

def p3(k, chk):
    A = k.A
    A.vm = []; A.lg = []
    A("s_load_dwordx2 %s, s[0:1], 96" % sr(SRD_OUT, 2))
    A("s_and_b32 s%d, s2, 7" % S_A)
    A("s_lshl_b32 s%d, s%d, 2" % (S_A, S_A))
    A("s_bfe_u32 s%d, s2, 0x20003" % S_T2)
    A("s_add_u32 s%d, s%d, s%d" % (S_A, S_A, S_T2))
    A("s_lshr_b32 s%d, s2, 5" % S_NT)
    A("v_lshlrev_b32 v8, 4, v0")
    A("s_mov_b32 s%d, 0x%x" % (S_T2, AUXF_OFF))
    ld_aux = "buffer_load_dwordx4 v[12:15], v8, %s, s%d offen sc1" % (sr(SRD_WS, 4), S_T2)
    A(ld_aux)
    for ds in range(4): A("v_add_u32 v%d, %d, v%d" % (VO + ds, 4096 * ds, V_L16))
    A("s_lshl_b32 s%d, s%d, 17" % (S_T3, S_W))
    A("s_lshl_b32 s%d, s%d, 19" % (S_CB, S_A))
    A("s_add_u32 s%d, s%d, s%d" % (S_CB, S_CB, S_T3))
    A("s_add_u32 s%d, s%d, 0x%x" % (S_CB, S_CB, CTX_OFF))
    A("s_lshl_b32 s%d, s%d, 19" % (S_WB, S_NT))
    A("s_add_u32 s%d, s%d, s%d" % (S_WB, S_WB, S_T3))
    A("s_add_u32 s%d, s%d, 0x%x" % (S_WB, S_WB, WOF_OFF))
    A("s_waitcnt vmcnt(0)")
    cmp_aux = ["v_min3_u32 v12, v12, v13, v14", "v_min_u32 v12, v12, v15", "v_cmp_eq_u32 vcc, 0, v12"]
    A(cmp_aux[:2]); A(chk("aux_spin", 12))
    A("s_barrier")
    k.stamp("p_aux")
    for ks in range(15): A(p3_w(ks))
    A("v_lshrrev_b32 v9, 2, v0")
    A("v_and_b32 v10, 3, v0")
    A("v_lshlrev_b32 v11, 10, v9")
    A("v_lshl_add_u32 v11, v10, 4, v11")
    A("s_lshl_b32 s%d, s%d, 16" % (S_X0, S_A))
    A("s_lshl_b32 s%d, s%d, 7" % (S_X1, S_NT))
    A("s_add_u32 s%d, s%d, s%d" % (S_X0, S_X0, S_X1))
    A("s_sub_u32 s%d, 31, s%d" % (S_T3, S_A))
    A("s_min_u32 s%d, s%d, s%d" % (S_T3, S_T3, S_A))
    A("s_lshr_b32 s%d, s%d, 1" % (S_T3, S_T3))
    A("s_lshl_b32 s%d, s%d, 7" % (S_T3, S_T3))
    A("s_add_u32 s%d, s%d, 0x%x" % (S_T2, S_T3, CTXF_OFF))
    A("v_and_b32 v12, 31, v%d" % V_LANE)
    A("v_lshlrev_b32 v12, 2, v12")
    A("s_waitcnt lgkmcnt(0)")
    A(srdl(SRD_OUT, 2 << 20))
    U = 0x18000
    for tok in range(2):
        si = (S_I0, S_I1)[tok]
        A("s_lshr_b32 s%d, s%d, 6" % (S_T3, si))
        A("s_cmp_lg_u32 s%d, s%d" % (S_T3, S_A))
        A("s_cbranch_scc1 upd_skip%d" % tok)
        o = ["s_add_u32 s%d, s%d, %d" % (S_T3, S_NT, 8 * tok), "s_mul_i32 s%d, s%d, %d" % (S_T3, S_T3, 224 * 256), "s_add_u32 s%d, s%d, 0x%x" % (S_T3, S_T3, YP_OFF)]
        for i in range(14):
            o.append("buffer_load_dwordx4 %s, v8, %s, s%d offen sc1" % (vr(CR + 4 * i, 4), sr(SRD_WS, 4), S_T3))
            o.append("s_add_u32 s%d, s%d, 0x1000" % (S_T3, S_T3))
        o.append("s_waitcnt vmcnt(0)")
        for i in range(1, 14):
            for e in range(4): o.append("v_add_f32 v%d, v%d, v%d" % (CR + e, CR + e, CR + 4 * i + e))
        for sw in ("v_permlane32_swap_b32", "v_permlane16_swap_b32"):
            for e in range(4): o.append("v_mov_b32 v%d, v%d" % (CR + 4 + e, CR + e))
            o.append("s_nop 1")
            for e in range(4): o.append("%s v%d, v%d" % (sw, CR + e, CR + 4 + e))
            o.append("s_nop 0")
            for e in range(4): o.append("v_add_f32 v%d, v%d, v%d" % (CR + e, CR + e, CR + 4 + e))
        o += ["v_and_b32 v13, 15, v%d" % V_LANE, "v_lshlrev_b32 v13, 4, v13", "s_lshl_b32 s%d, s%d, 8" % (S_T3, S_W),
              "s_add_u32 s%d, s%d, 0x%x" % (S_T3, S_T3, U + 1024 * tok), "v_add_u32 v13, s%d, v13" % S_T3,
              "ds_write_b128 v13, %s" % vr(CR, 4)]
        A(("RAW", o))
        A.label("upd_skip%d" % tok)
    ld_ctx = "buffer_load_dword v13, v12, %s, s%d offen sc1" % (sr(SRD_WS, 4), S_T2)
    A(ld_ctx)
    A("s_waitcnt vmcnt(0)")
    A(chk("ctx_spin", 13))
    k.stamp("p_ctx")
    A.vm = []
    for ks in range(CRN - 1): A(p3_c(ks))
    A(p3_w(15))
    qm = Q(cap=2)
    for ks in range(32):
        mf = []
        for nt in range(4):
            for tl in range(4):
                d = vr(PACC + (nt * 4 + tl) * 4, 4)
                mf.append("%s %s, %s, %s, %s" % (MF, d, ar((ks & 15) * 16 + 4 * nt, 4), vr(CR + (ks % CRN) * 16 + 4 * tl, 4), d if ks else "0"))
        tags = [("pc", ks)] + ([("pw", ks)] if ks >= 15 else [])
        t = min(tags, key=lambda t: A.vm_after(t))
        if ks + CRN - 1 < 32: qm.add(p3_c(ks + CRN - 1))
        if ks >= 1 and ks + 15 < 32: qm.add(p3_w(ks + 15))
        if ks == 24:
            qm.add([("buffer_load_dwordx4 a[0:3], v11, %s, s%d offen" % (sr(SRD_X, 4), S_X0), "fx"),
                    ("buffer_load_dwordx4 a[4:7], v11, %s, s%d offen offset:64" % (sr(SRD_X, 4), S_X0), "fx"),
                    "v_lshlrev_b32 v12, 2, v9", "s_lshl_b32 s%d, s%d, 8" % (S_T2, S_A), "s_add_u32 s%d, s%d, 0x%x" % (S_T2, S_T2, GATE_OFF),
                    ("buffer_load_dword v12, v12, %s, s%d offen sc1" % (sr(SRD_WS, 4), S_T2), "fx")])
        step(A, mf, [qm], pre={0: [("WAITVM", t)]}, drain=[qm], vmgap=1)
    k.stamp("p_mm")
    A("v_and_b32 v13, 15, v%d" % V_LANE)
    A("v_mul_u32_u24 v13, %d, v13" % RSTR)
    A("v_lshrrev_b32 v14, 4, v%d" % V_LANE)
    A("v_lshl_add_u32 v13, v14, 4, v13")
    A("s_mul_i32 s%d, s%d, %d" % (S_T2, S_W, 64 * RSTR))
    A("v_add_u32 v13, s%d, v13" % S_T2)
    A("v_mul_u32_u24 v14, %d, v9" % RSTR)
    A("v_lshl_add_u32 v14, v10, 5, v14")
    A("s_nop 1")
    for nt in range(4):
        for tl in range(4):
            A("ds_write_b128 v13, %s offset:%d" % (vr(PACC + (nt * 4 + tl) * 4, 4), tl * 16 * RSTR + nt * 64))
    A("s_waitcnt lgkmcnt(0)")
    A("s_barrier")
    R = 16
    for p in range(4):
        for i in range(4):
            A("ds_read_b128 %s, v14 offset:%d" % (vr(R + p * 16 + 4 * i, 4), p * 64 * RSTR + (i >> 1) * 128 + (i & 1) * 16))
    X = 96
    A("s_waitcnt vmcnt(0)")
    for i in range(8): A("v_accvgpr_read_b32 v%d, a%d" % (X + 16 + i, i))
    for i in range(8):
        A("v_lshlrev_b32 v%d, 16, v%d" % (X + 2 * i, X + 16 + i))
        A("v_and_b32 v%d, 0xffff0000, v%d" % (X + 2 * i + 1, X + 16 + i))
    for tok in range(2):
        si = (S_I0, S_I1)[tok]
        A("s_lshr_b32 s%d, s%d, 6" % (S_T3, si))
        A("s_cmp_lg_u32 s%d, s%d" % (S_T3, S_A))
        A("s_cbranch_scc1 upd_no%d" % tok)
        A("s_and_b32 s%d, s%d, 63" % (S_T3, si))
        A("v_lshlrev_b32 v15, 5, v10")
        A("v_add_u32 v15, 0x%x, v15" % (U + 1024 * tok))
        for p in range(4):
            for i in range(4):
                A("ds_read_b128 %s, v15 offset:%d" % (vr(128 + p * 16 + 4 * i, 4), p * 256 + (i >> 1) * 128 + (i & 1) * 16))
        A("v_cmp_eq_u32 vcc, s%d, v9" % S_T3)
        A("s_waitcnt lgkmcnt(0)")
        for p in range(1, 4):
            for i in range(16): A("v_add_f32 v%d, v%d, v%d" % (128 + i, 128 + i, 128 + 16 * p + i))
        for i in range(16): A("v_cndmask_b32 v%d, 0, v%d, vcc" % (128 + i, 128 + i))
        for i in range(16): A("v_add_f32 v%d, v%d, v%d" % (X + i, X + i, 128 + i))
        A.label("upd_no%d" % tok)
    A("s_waitcnt lgkmcnt(0)")
    for i in range(16): A("v_add_f32 v%d, v%d, v%d" % (R + i, R + i, R + 16 + i))
    for i in range(16): A("v_add_f32 v%d, v%d, v%d" % (R + 32 + i, R + 32 + i, R + 48 + i))
    for i in range(16): A("v_add_f32 v%d, v%d, v%d" % (R + i, R + i, R + 32 + i))
    for i in range(16): A("v_sub_f32 v%d, v%d, v%d" % (R + i, R + i, X + i))
    for i in range(16): A("v_fma_f32 v%d, v12, v%d, v%d" % (R + i, R + i, X + i))
    for i in range(8): A("v_cvt_pk_bf16_f32 v%d, v%d, v%d" % (R + i, R + 2 * i, R + 2 * i + 1))
    A("buffer_store_dwordx4 %s, v11, %s, s%d offen" % (vr(R, 4), sr(SRD_OUT, 4), S_X0))
    A("buffer_store_dwordx4 %s, v11, %s, s%d offen offset:64" % (vr(R + 4, 4), sr(SRD_OUT, 4), S_X0))
    return [("aux_spin", ld_aux, cmp_aux), ("ctx_spin", ld_ctx, 13)]
```

```python
import sys
from asmlib import *
from sched import *
from defs import *
import mk2, att, tail
from mk2 import K, prologue, frontend, dump_stamps

class NoTrack:
    def __init__(self, A): self.A = A
    def __enter__(self):
        A = self.A; self.sv = (list(A.vm), A.out, list(A.lg))
    def __exit__(self, *a):
        A = self.A; A.vm, A.out, A.lg = self.sv

def init_zero(A):
    with NoTrack(A):
        A("s_or_b32 s%d, s2, s%d" % (S_T2, S_W))
        A("s_cmp_lg_u32 s%d, 0" % S_T2)
        A("s_cbranch_scc1 init_skip")
        for i in range(4): A("v_mov_b32 v%d, 0" % (96 + i))
        for n in range(0, ZERO_BYTES // 1024, 4):
            A("s_mov_b32 s%d, 0x%x" % (S_T2, MISC_OFF + 1024 * n))
            for q in range(4):
                A("buffer_store_dwordx4 v[96:99], v%d, %s, s%d offen offset:%d sc1" % (V_L16, sr(SRD_WS, 4), S_T2, 1024 * q))
        A("v_mov_b32 v100, 1")
        A("s_waitcnt vmcnt(0)")
        A("s_mov_b64 exec, 1")
        A("buffer_store_dword v100, off, %s, 0 sc1" % sr(SRD_DBG, 4))
        A("s_mov_b64 exec, -1")
        A.label("init_skip")

def spin(A, name, load, vreg, back):
    with NoTrack(A):
        A.label(name)
        A("s_mov_b32 s%d, 0" % S_T3)
        A.label(name + "_l")
        A("s_sleep 4")
        A(load)
        A("s_add_u32 s%d, s%d, 1" % (S_T3, S_T3))
        A("s_waitcnt vmcnt(0)")
        A(vreg if isinstance(vreg, list) else "v_cmp_eq_u32 vcc, 0, v%d" % vreg)
        A("s_cmp_gt_u32 s%d, %d" % (S_T3, SPIN_MAX))
        A("s_cbranch_scc1 %s" % back)
        A("s_cmp_lg_u64 vcc, 0")
        A("s_cbranch_scc1 %s_l" % name)
        A("s_branch %s" % back)

def chk(name, vreg):
    return ["v_cmp_eq_u32 vcc, 0, v%d" % vreg, "s_nop 0", "s_cmp_lg_u64 vcc, 0", "s_cbranch_scc1 %s" % name, name + "_ok:"]

V_INIT = 18
LD_INIT = "buffer_load_dword v%d, off, %s, 0 sc1" % (V_INIT, sr(SRD_DBG, 4))

def flag_store(sa, w0only=None, v=19):
    o = []
    if w0only: o += ["s_cmp_lg_u32 s%d, 0" % S_W, "s_cbranch_scc1 %s" % w0only]
    o += ["v_mov_b32 v%d, 1" % v, "s_mov_b64 exec, 1",
          "buffer_store_dword v%d, off, %s, s%d sc1" % (v, sr(SRD_WS, 4), sa), "s_mov_b64 exec, -1"]
    if w0only: o.append(w0only + ":")
    return ("RAW", o)

S_KVF = 70
def kernel(A, name, opts):
    k = K(A, name, opts)
    kernel_header(A, name)
    k.stamp("start")
    prologue(k)
    def pro(A):
        A(tail.router_loads())
        init_zero(A)
    hooks = {"pro": pro}
    qx = Q(tail.router_calc(), cap=2)
    for kap in range(4, 16): hooks[kap] = lambda k: [qx]
    hooks[("pre", 20)] = [(LD_INIT, "init")]
    hooks[("tag", 28)] = ["init"]
    hooks[("pre", 28)] = chk("init_spin", V_INIT) + tail.router_store()
    hooks[("pre", 60)] = tail.aux_ptrs() + ["s_lshl_b32 s%d, s%d, 7" % (S_KVF, S_H), "s_lshl_b32 s%d, s%d, 2" % (S_KVF + 1, S_J),
                          "s_add_u32 s%d, s%d, s%d" % (S_KVF, S_KVF, S_KVF + 1), "s_add_u32 s%d, s%d, 0x%x" % (S_KVF, S_KVF, KVF_OFF)]
    hooks[("qm", 76)] = tail.aux_loads()
    hooks[("tag", 83)] = [("st", 3)]
    hooks[("pre", 83)] = [flag_store(S_KVF, "kvf_skip")]
    hooks[("qm", 84)] = tail.key_loads()
    hooks[("tag", 91)] = ["aux"]
    frontend(k, hooks)
    assert not qx.items
    k.stamp("fe")
    ld_kv = "buffer_load_dword v21, v20, %s, s%d offen sc1" % (sr(SRD_WS, 4), S_KV)
    A("v_and_b32 v20, 7, v%d" % V_LANE)
    A("v_lshlrev_b32 v20, 2, v20")
    A("s_lshl_b32 s%d, s%d, 7" % (S_KV, S_H))
    A("s_add_u32 s%d, s%d, 0x%x" % (S_KV, S_KV, KVF_OFF))
    A((ld_kv, "kvf"))
    A(("WAITVM", "key"))
    A(tail.key_min(35))
    A(chk("key_spin", 35))
    A(tail.top2(32, S_T4, S_T5))
    tail.xsel_dma(A)
    A(att.setup())
    A(att.zero_a())
    A(("WAITVM", "kvf"))
    A(chk("kv_spin", 21))
    k.stamp("kvf")
    att.prefetch(A)
    k.stamp("a_pf")
    tail.wo_xpose(A, 64)
    tail.mod(A, 32, 128)
    A(att.zero_o(0) + att.zero_p())
    k.stamp("aux")
    w0_end = ["s_lshl_b32 s%d, s2, 4" % S_T2, "s_lshl_b32 s%d, s%d, 2" % (S_T3, S_W), "s_add_u32 s%d, s%d, s%d" % (S_T2, S_T2, S_T3),
              "s_add_u32 s%d, s%d, 0x%x" % (S_T2, S_T2, AUXF_OFF), "s_waitcnt vmcnt(8)", flag_store(S_T2, None, V_T)]
    att.attention(k, w0_end)
    A("s_lshl_b32 s%d, s%d, 7" % (S_T2, S_J))
    A("s_lshl_b32 s%d, s%d, 2" % (S_T3, S_H))
    A("s_add_u32 s%d, s%d, s%d" % (S_T2, S_T2, S_T3))
    A("s_add_u32 s%d, s%d, 0x%x" % (S_T2, S_T2, CTXF_OFF))
    A(flag_store(S_T2, "ctxf_skip", V_T))
    k.stamp("a_fl")
    sp = tail.p3(k, chk)
    if opts.get("stamps") or opts.get("cyc"):
        A("s_waitcnt vmcnt(0)")
        k.stamp("end")
        dump_stamps(k)
    A.label("%s_end" % name)
    A("s_endpgm")
    att.redo(k)
    spin(A, "init_spin", LD_INIT, V_INIT, "init_spin_ok")
    spin(A, "kv_spin", ld_kv, 21, "kv_spin_ok")
    spin(A, "key_spin", tail.key_loads(), tail.key_min(35) + ["v_cmp_eq_u32 vcc, 0, v35"], "key_spin_ok")
    for nm, ld, c in sp: spin(A, nm, ld, c, nm + "_ok")
    return k

def build(out, opts):
    A = Asm()
    A.raw('.amdgcn_target "amdgcn-amd-amdhsa--gfx950"')
    A.raw(".text")
    name = "gated_mix__compressed_kv_cla__moe_arch_mod__prompt_kernel"
    k = kernel(A, name, opts)
    errs, n = check(A)
    for e in errs: print(e, file=sys.stderr)
    print("instructions:", n, "hazards:", len(errs), "maxout:", A.maxout, file=sys.stderr)
    l = "; @launch kernel=%s grid=(256,1,1) block=(256,1,1) lds=163840\n; stamps: %s" % (name, " ".join(k.stn))
    open(out, "w").write(mk2.HEAD + l + "\n" + A.text() + '.section .rodata,"a"\n' + kernel_desc(name, 512, 256))
if __name__ == "__main__":
    opts = {k.split('=')[0]: (int(k.split('=')[1]) if '=' in k else True) for k in sys.argv[2:]}
    build(sys.argv[1], opts)
```

```python
from asmlib import *
from sched import *
from defs import *

def qk(grp, Sb, zero=False):
    g = 0 if grp == "S" else 1
    out = []
    for ds in range(4):
        for qt in range(2):
            for kt in range(2):
                d = vr(Sb + (qt * 2 + kt) * 4, 4)
                c = d if ds else ("0" if zero else vr(CIN + g * 8 + qt * 4, 4))
                out.append("%s %s, %s, %s, %s" % (MF, d, ar(KF + (ds * 2 + kt) * 4, 4), ar(qfrag(g * 2 + qt, ds), 4), c))
    return out

def pv(grp, Pb, vf=VF):
    g = 0 if grp == "S" else 1
    out = []
    for dt in range(8):
        for qt in range(2):
            d = vr(OREG + g * 64 + (qt * 8 + dt) * 4, 4)
            out.append("%s %s, %s, %s, %s" % (MF, d, ar(vf + dt * 4, 4), vr(Pb + qt * 4, 4), d))
    for qt in range(2):
        d = ar(LREG + g * 8 + qt * 4, 4)
        out.append("%s %s, %s, %s, %s" % (MF, d, ar(ONES, 4), vr(Pb + qt * 4, 4), d))
    return out

def sm(Sb, Pb):
    m = {}
    for i in range(16): m.setdefault(2 * i, []).append("v_exp_f32 v%d, v%d" % (Sb + i, Sb + i))
    for k in range(8): m.setdefault(4 * k + 3, []).append("v_cvt_pk_bf16_f32 v%d, v%d, v%d" % (Pb + k, Sb + 2 * k, Sb + 2 * k + 1))
    return m
def sm1(Sb, Pb): return {g: v for g, v in sm(Sb, Pb).items() if g < 16}
def sm2(Sb, Pb): return {g - 16: v for g, v in sm(Sb, Pb).items() if g >= 16}

def rd(dst, off, tag, va=V_RD, grp=4):
    return [("ds_read_b128 %s, v%d offset:%d" % (ar(dst + 4 * f, 4), va, off + 1024 * f), (tag, f // grp)) for f in range(8)]

def mask(Sb):
    out = []
    for r in range(4): out.append("v_cndmask_b32 v%d, v%d, v%d, %s" % (Sb + r, Sb + r, V_NEG, sr(MSK + 2 * r, 2)))
    for r in range(4): out.append("v_mov_b32 v%d, v%d" % (Sb + 4 + r, V_NEG))
    for r in range(4): out.append("v_cndmask_b32 v%d, v%d, v%d, %s" % (Sb + 12 + r, Sb + 12 + r, V_NEG, sr(MSK + 2 * r, 2)))
    return out

RDL = "v_readlane_b32 s%d, v%d, s%d" % (S_DOFF, V_TAB, S_TT)
M0A = "s_add_u32 m0, s%d, s%d" % (S_SLOT, S_W8K)
M0B = "s_add_u32 m0, m0, 0x1000"
TTI = "s_add_u32 s%d, s%d, 1" % (S_TT, S_TT)
VDM = "v_add_u32 v%d, s%d, v%d" % (V_DM, S_DOFF, V_L16)
VRD = "v_xor_b32 v%d, s%d, v%d" % (V_RD, S_SLOT, V_L16X)
SLA = ["s_add_u32 s%d, s%d, 0x8000" % (S_SLOT, S_SLOT), "s_and_b32 s%d, s%d, 0x1ffff" % (S_SLOT, S_SLOT)]
def dmai(n):
    return "buffer_load_dwordx4 v%d, %s, %s offen offset:%d sc1 lds" % (V_DM, sr(SRD_WS, 4), "s%d" % S_4K if n >= 4 else "0", 1024 * (n & 3))
CARRY = "v_cvt_pk_bf16_f32 v%d, v%d, v%d" % (P0 + 3, S0 + 6, S0 + 7)
WAITW = "s_waitcnt vmcnt(16) lgkmcnt(0)"

def smpost():
    post = {}
    for base, m in ((0, sm2(S0, P0)), (18, sm1(S1, P1)), (34, sm2(S1, P1)), (52, sm1(S0, P0))):
        for g, v in m.items(): post[base + g] = list(v)
    assert post[67] == [CARRY]
    del post[67]
    return post

def window(A, prev, cur, mask_even=False, tail=None, br=None):
    gp = "S" if prev == "D" else "L"
    gc = "S" if cur == "D" else "L"
    mf = pv("L", P1) + qk(gc, S0) + pv(gp, P0) + qk("L", S1)
    post = smpost()
    def put(g, x): post.setdefault(g, []).append(x)
    put(1, CARRY); put(1, VRD)
    K1 = rd(KF, 0, "k1", grp=2); V1 = rd(VF, 16384, "v1", grp=2); K2 = rd(KF, 8192, "k2", grp=2); V2 = rd(VF, 24576, "v2", grp=2)
    for g, x in zip((3, 5, 5, 11, 13, 13, 15, 16), K1): put(g, x)
    for g, x in zip((16, 19, 19, 21, 25, 27, 27, 29), V1): put(g, x)
    if cur == "S":
        for g, x in zip((33, 35, 35, 37, 41, 43, 43, 45), K2): put(g, x)
    if prev == "S":
        for g, x in zip((49, 50, 50, 51, 51, 55, 57, 57), V2): put(g, x)
    put(7, VDM)
    for n, g in enumerate((9, 17, 23, 31, 39, 47, 53, 61)): put(g, dmai(n))
    put(65, RDL)
    s1 = {0: ["s_barrier"], 2: [SLA[0]], 3: [SLA[1]], 4: [M0A], 34: [M0B], 62: [TTI], 66: [WAITW]}
    for i, x in enumerate(tail or []): s1[65 - len(tail) + i + (1 if 65 - len(tail) + i >= 62 else 0)] = [x]
    if br: s1[67] = [br]
    pre = {}
    for ds in range(4):
        pre[18 + 4 * ds] = [("WAITLG", ("k1", ds))]
        pre[34 + 4 * ds] = [("WAITLG", ("v1", ds))]
        if cur == "S": pre[52 + 4 * ds] = [("WAITLG", ("k2", ds))]
    qx = Q(mask(S0) if mask_even else [], first=35)
    n = step(A, mf, [qx], pre=pre, post=post, s1=s1, drain=[qx])
    if n: print("window", prev, cur, "over", n, file=sys.stderr)

def fin(A, k, prev):
    gp = "S" if prev == "D" else "L"
    A(["s_waitcnt vmcnt(8)", "s_barrier", CARRY, VRD] + SLA)
    qr = Q(rd(KF, 0, "k") + ["v_xor_b32 v%d, s%d, v%d" % (V_T, S_SLOT, V_L16X)])
    step(A, pv("L", P1), [qr], post=sm2(S0, P0), drain=[qr])
    qr = Q(rd(VF, 16384, "v"))
    step(A, qk("L", S0), [qr], pre={0: [("WAITLG", ("k", 0))], 8: [("WAITLG", ("k", 1))]}, post=sm1(S1, P1), drain=[qr])
    if prev == "S": qr = Q(rd(KF, 24576, "k"))
    else: qr = Q(rd(KF, 16384, "k", va=V_T))
    step(A, pv(gp, P0), [qr], pre={0: [("WAITLG", ("v", 0))], 8: [("WAITLG", ("v", 1))]}, post=sm2(S1, P1), drain=[qr])
    lab = A.uid("nomask")
    A("s_cmp_lg_u32 s%d, 3" % S_W)
    A("s_cbranch_scc1 %s" % lab)
    A(mask(S0))
    A.label(lab)
    smq = []
    m = sm(S0, P0)
    for g in sorted(m): smq += m[g]
    ex = [x for x in smq if x.startswith("v_exp")]; cv = [x for x in smq if x.startswith("v_cvt")]
    order = ex[:3]
    for i in range(3, 16):
        order.append(ex[i])
        if i & 1: order.append(cv[(i - 3) >> 1])
    order += ["s_nop 0", cv[7]]
    qs = Q(order, eager=True)
    if prev == "S":
        qr = Q(rd(VF, 16384, "v", va=V_T), cap=1)
        step(A, pv("L", P1, vf=KF), [qs, qr], pre={0: [("WAITLG", ("k", 0))], 8: [("WAITLG", ("k", 1))]}, drain=[qr, qs], cap=3)
        A("s_waitcnt lgkmcnt(0)")
        A("s_nop 0")
        A(pv("L", P0))
    else:
        step(A, pv("L", P1), [qs], drain=[qs], cap=3)
        A("s_waitcnt lgkmcnt(0)")
        A("s_nop 0")
        A(pv("L", P0, vf=KF))

def epilogue(A, grp):
    g = 0 if grp == "S" else 1
    base = S_CTXS + g
    T = V_T
    for qt in range(2):
        A("v_accvgpr_read_b32 v%d, a%d" % (T + qt, LREG + g * 8 + qt * 4))
    for qt in range(2):
        A("v_rcp_f32 v%d, v%d" % (T + 2 + qt, T + qt))
    A("v_max_f32 v%d, v%d, v%d" % (T, T, T + 1))
    A("v_cmp_nlt_f32 vcc, v%d, s%d" % (T, S_LIM))
    n = 0
    for ds in range(4):
        A("s_add_u32 s%d, s%d, %d" % (S_X0, base, ds * 4096))
        for qt in range(2):
            t = OREG + g * 64 + qt * 32 + ds * 8
            for i in range(8): A("v_mul_f32 v%d, v%d, v%d" % (t + i, t + i, T + 2 + qt))
            A(cvt8(t))
            A("buffer_store_dwordx4 %s, v%d, %s, s%d offen offset:%d sc1" % (vr(t, 4), V_L16, sr(SRD_WS, 4), S_X0, qt * 1024))
            if n == 0: A("s_or_b64 %s, %s, vcc" % (sr(S_BAD, 2), sr(S_BAD, 2)))
            else: A("s_nop 0")
            A("%s %s, %s, %s, %s" % (MF, vr(T + 4, 4), ar(ZERO, 4), vr(t, 4), vr(T + 4, 4) if n else "0"))
            n += 1
    A("s_nop 7")
    A("v_cmp_u_f32 vcc, v%d, v%d" % (T + 4, T + 4))
    A("s_nop 0")
    A("s_or_b64 %s, %s, vcc" % (sr(S_BAD, 2), sr(S_BAD, 2)))

def zero_a():
    return ["v_accvgpr_write_b32 a%d, 0" % r for r in list(range(VF, VF + 32)) + list(range(LREG, LREG + 16))]
def zero_o(g): return ["v_mov_b32 v%d, 0" % (OREG + 64 * g + r) for r in range(64)]
def zero_p(): return ["v_mov_b32 v%d, 0" % (P1 + r) for r in range(8)]

def setup():
    o = []
    T = V_T
    o += ["s_lshl_b32 s%d, s%d, 13" % (S_W8K, S_W), "s_movk_i32 s%d, 0x1000" % S_4K, "s_mov_b32 s%d, 0" % S_REDO,
          "s_mov_b32 s%d, 0x4e800000" % S_LIM]
    o += ["v_mov_b32 v%d, 0xff800000" % V_NEG, "v_xor_b32 v%d, 0x10000, v%d" % (V_L16X, V_L16)]
    for r in range(4): o.append("v_mov_b32 v%d, 0xff800000" % (V_M + r))
    o.append("v_mov_b32 v%d, 0x3f803f80" % T)
    for r in range(4):
        o.append("v_accvgpr_write_b32 a%d, v%d" % (ONES + r, T))
        o.append("v_accvgpr_write_b32 a%d, 0" % (ZERO + r))
    o += ["v_lshrrev_b32 v%d, 4, v%d" % (T, V_LANE), "v_lshlrev_b32 v%d, 2, v%d" % (T, T), "v_and_b32 v%d, 15, v%d" % (T + 1, V_LANE),
          "v_sub_u32 v%d, v%d, v%d" % (T + 1, T + 1, T)]
    for r in range(4):
        o.append("v_cmp_gt_i32 %s, %d, v%d" % (sr(MSK + 2 * r, 2), r, T + 1))
    for d, sg in ((S_CTXS, S_GS), (S_CTXL, S_GL)):
        o += ["s_lshr_b32 s%d, s%d, 1" % (S_X0, sg), "s_lshl_b32 s%d, s%d, 5" % (S_X0, S_X0), "s_add_u32 s%d, s%d, s%d" % (S_X0, S_X0, S_H),
              "s_lshl_b32 s%d, s%d, 14" % (S_X0, S_X0), "s_and_b32 s%d, s%d, 1" % (S_X1, sg), "s_lshl_b32 s%d, s%d, 11" % (S_X1, S_X1),
              "s_add_u32 s%d, s%d, s%d" % (S_X0, S_X0, S_X1), "s_add_u32 s%d, s%d, 0x%x" % (d, S_X0, CTX_OFF)]
    o += ["s_lshr_b32 s%d, s%d, 1" % (S_X0, S_W),
          "v_subrev_u32 v%d, s%d, v%d" % (T, S_X0, V_LANE),
          "s_lshl_b32 s%d, s%d, 2" % (S_X1, S_J), "s_add_u32 s%d, s%d, 4" % (S_X1, S_X1),
          "v_lshlrev_b32 v%d, 1, v%d" % (T + 1, T), "v_subrev_u32 v%d, s%d, v%d" % (T + 1, S_X1, T + 1),
          "v_max_i32 v%d, v%d, v%d" % (T + 1, T + 1, T),
          "v_add_u32 v%d, 1, v%d" % (T + 2, T + 1),
          "v_sub_u32 v%d, 64, v%d" % (T + 3, T),
          "v_cmp_gt_i32 vcc, s%d, v%d" % (S_X1, T), "s_and_b32 s%d, s%d, 1" % (S_DOFF, S_W), "s_nop 0",
          "v_cndmask_b32 v%d, v%d, v%d, vcc" % (T + 2, T + 2, T + 3),
          "s_cmp_eq_u32 s%d, 1" % S_DOFF,
          "s_cselect_b64 vcc, -1, 0",
          "s_sub_u32 s%d, s%d, 3" % (S_X1, S_X1),
          "v_cndmask_b32 v%d, v%d, v%d, vcc" % (T + 1, T + 1, T + 2),
          "s_cmp_eq_u32 s%d, 1" % S_DOFF,
          "s_cselect_b32 s%d, s%d, 0" % (S_X1, S_X1),
          "s_sub_u32 s%d, 32, s%d" % (S_DOFF, S_DOFF),
          "s_lshl_b32 s%d, s%d, 13" % (S_X0, S_X0),
          "s_lshl_b32 s%d, s%d, 20" % (S_EVT, S_H),
          "s_add_u32 s%d, s%d, s%d" % (S_X0, S_X0, S_EVT),
          "v_lshlrev_b32 v%d, 14, v%d" % (T + 1, T + 1),
          "v_add_u32 v%d, s%d, v%d" % (T + 1, S_X0, T + 1),
          "v_mov_b32 v%d, 0x40000000" % (T + 2),
          "v_cmp_gt_i32 vcc, s%d, v%d" % (S_X1, T), "s_nop 1",
          "v_cndmask_b32 v%d, v%d, v%d, vcc" % (T + 1, T + 1, T + 2),
          "v_cmp_lt_i32 vcc, s%d, v%d" % (S_DOFF, T), "s_nop 1",
          "v_cndmask_b32 v%d, v%d, v%d, vcc" % (V_TAB, T + 1, T + 2)]
    return o

def rowmax(Sb, g):
    o = []
    T = V_T
    for qt in range(2):
        s = Sb + qt * 8; t = T + 2 * qt
        o.append("v_max3_f32 v%d, v%d, v%d, v%d" % (t, s, s + 1, V_M + g * 2 + qt))
        o.append("v_max3_f32 v%d, v%d, v%d, v%d" % (t + 1, s + 2, s + 3, s + 4))
        o.append("v_max3_f32 v%d, v%d, v%d, v%d" % (t, t, s + 5, s + 6))
        o.append("v_max3_f32 v%d, v%d, v%d, v%d" % (t, t, t + 1, s + 7))
    for sw in ("v_permlane32_swap_b32", "v_permlane16_swap_b32"):
        for qt in range(2): o.append("v_mov_b32 v%d, v%d" % (T + 2 * qt + 1, T + 2 * qt))
        o.append("s_nop 1")
        for qt in range(2): o.append("%s v%d, v%d" % (sw, T + 2 * qt, T + 2 * qt + 1))
        o.append("s_nop 0")
        for qt in range(2): o.append("v_max_f32 v%d, v%d, v%d" % (T + 2 * qt, T + 2 * qt, T + 2 * qt + 1))
    for qt in range(2):
        for i in range(8): o.append("v_sub_f32 v%d, v%d, v%d" % (Sb + qt * 8 + i, Sb + qt * 8 + i, T + 2 * qt))
        for r in range(4): o.append("v_sub_f32 v%d, 0, v%d" % (CIN + g * 8 + qt * 4 + r, T + 2 * qt))
    return o

def dma_seq():
    return [TTI, RDL] + SLA + [M0A, VDM] + [dmai(n) for n in range(4)] + [M0B, "s_nop 0"] + [dmai(n) for n in range(4, 8)]

def prefetch(A):
    A("s_mov_b32 s%d, -1" % S_TT)
    A("s_mov_b32 s%d, 0x8000" % S_SLOT)
    A("s_mov_b64 %s, 0" % sr(S_BAD, 2))
    A("s_mov_b32 s%d, 0" % S_SDONE)
    for i in range(3): A(dma_seq())

def attention(k, w0_end=None):
    A = k.A; N = k.name
    A.label("att_w0")
    A(["s_waitcnt vmcnt(16) lgkmcnt(0)", "s_barrier", VRD])
    A(rd(KF, 0, "k"))
    qd = Q([x for x in dma_seq() if x != "s_nop 0"] + [TTI, RDL], cap=2)
    qz = Q(zero_o(1))
    step(A, qk("S", S0, zero=True), [qd, qz], pre={0: [("WAITLG", ("k", 0))], 8: [("WAITLG", ("k", 1))]}, vmgap=2)
    step(A, qk("L", S1, zero=True), [qd, qz], drain=[qd, qz], vmgap=2)
    A("s_cmp_lg_u32 s%d, 0" % S_GS)
    A("s_cbranch_scc1 w0_nomask")
    A(mask(S0))
    A.label("w0_nomask")
    A(rowmax(S0, 0))
    A(rowmax(S1, 1))
    m = sm1(S0, P0)
    for g in sorted(m)[:-1]:
        if m[g][0].startswith("v_cvt"): A("s_nop 0")
        A(m[g])
    if w0_end: A(w0_end)
    A(WAITW)
    A("s_add_u32 s%d, s%d, 3" % (S_EVT, S_GS))
    A("s_cmp_lt_u32 s%d, 2" % S_GS)
    A("s_cbranch_scc1 dd_done")
    A.raw(".p2align 3")
    A.label("dd_loop")
    window(A, "D", "D", tail=["s_cmp_lg_u32 s%d, s%d" % (S_TT, S_EVT)], br="s_cbranch_scc1 dd_loop")
    A.label("dd_done")
    A("s_cmp_eq_u32 s%d, 0" % S_GS)
    A("s_cbranch_scc1 ds_win")
    window(A, "D", "D", mask_even=True, tail=["s_cmp_eq_u32 s%d, 35" % S_TT], br="s_cbranch_scc1 fin_d")
    A.label("ds_win")
    window(A, "D", "S", tail=["s_lshl_b32 s%d, s%d, 2" % (S_EVT, S_J), "s_add_u32 s%d, s%d, 8" % (S_EVT, S_EVT),
                              "s_min_u32 s%d, s%d, 35" % (S_EVT, S_EVT), "s_cmp_eq_u32 s%d, 3" % S_W], br="s_cbranch_scc1 ss_chk")
    A("s_nop 6")
    A(mask(S1))
    A.label("ss_chk")
    A("s_cmp_lg_u32 s%d, s%d" % (S_TT, S_EVT))
    A("s_cbranch_scc1 ss_loop")
    A("s_cmp_eq_u32 s%d, 35" % S_EVT)
    A("s_cbranch_scc1 fin_s")
    epilogue(A, "S")
    A("s_mov_b32 s%d, 1" % S_SDONE)
    A("s_mov_b32 s%d, 35" % S_EVT)
    A.raw(".p2align 3")
    A.label("ss_loop")
    window(A, "S", "S", tail=["s_cmp_lg_u32 s%d, s%d" % (S_TT, S_EVT)], br="s_cbranch_scc1 ss_loop")
    A("s_branch ss_chk")
    A.label("fin_d")
    fin(A, k, "D")
    A("s_branch att_epi")
    A.label("fin_s")
    fin(A, k, "S")
    A.label("att_epi")
    k.stamp("a_end")
    A("s_cmp_lg_u32 s%d, 0" % S_SDONE)
    A("s_cbranch_scc1 att_epi_l")
    epilogue(A, "S")
    A.label("att_epi_l")
    A("s_nop 7")
    epilogue(A, "L")
    T = V_T
    A("s_cmp_lg_u64 %s, 0" % sr(S_BAD, 2))
    A("s_cselect_b32 s%d, 1, 0" % S_X0)
    if k.opts.get("forceredo"): A("s_mov_b32 s%d, 1" % S_X0)
    A("s_lshl_b32 s%d, s%d, 2" % (S_X1, S_W))
    A("s_add_u32 s%d, s%d, 0x20000" % (S_X1, S_X1))
    A("v_mov_b32 v%d, s%d" % (T, S_X0))
    A("v_mov_b32 v%d, s%d" % (T + 1, S_X1))
    A("v_mov_b32 v%d, 0x20000" % (T + 2))
    A("ds_write_b32 v%d, v%d" % (T + 1, T))
    A("s_waitcnt vmcnt(0) lgkmcnt(0)")
    A("s_barrier")
    A("ds_read_b128 %s, v%d" % (vr(T + 4, 4), T + 2))
    A("s_waitcnt lgkmcnt(0)")
    A("v_or3_b32 v%d, v%d, v%d, v%d" % (T, T + 4, T + 5, T + 6))
    A("v_or_b32 v%d, v%d, v%d" % (T, T, T + 7))
    A("s_nop 0")
    A("v_readfirstlane_b32 s%d, v%d" % (S_X0, T))
    A("s_nop 0")
    A("s_cmp_gt_u32 s%d, s%d" % (S_X0, S_REDO))
    A("s_cbranch_scc1 att_redo")

def redo(k):
    A = k.A
    A.label("att_redo")
    A("s_mov_b32 s%d, 1" % S_REDO)
    for g, sg in ((0, S_GS), (1, S_GL)):
        A("s_mov_b32 s%d, 0" % S_TT)
        A("s_lshl_b32 s%d, s%d, 20" % (S_X0, S_H))
        A.label("redo_loop%d" % g)
        A("s_add_u32 s%d, s%d, 0x1000" % (S_X1, S_X0))
        for f in range(8):
            A("buffer_load_dwordx4 %s, v%d, %s, s%d offen offset:%d sc1" % (ar(KF + 4 * f, 4), V_L16, sr(SRD_WS, 4), S_X1 if f >= 4 else S_X0, 1024 * (f & 3)))
        A("s_waitcnt vmcnt(0)")
        A(qk("SL"[g], S0, zero=True))
        A("s_nop 7")
        A("s_cmp_lg_u32 s%d, s%d" % (S_TT, sg))
        A("s_cbranch_scc1 redo_nm%d" % g)
        A(mask(S0))
        A.label("redo_nm%d" % g)
        for qt in range(2):
            m = V_M + g * 2 + qt
            for i in range(4):
                A("v_max3_f32 v%d, v%d, v%d, v%d" % (m, m, S0 + qt * 8 + 2 * i, S0 + qt * 8 + 2 * i + 1))
        A("s_add_u32 s%d, s%d, 0x4000" % (S_X0, S_X0))
        A("s_add_u32 s%d, s%d, 1" % (S_TT, S_TT))
        A("s_cmp_le_u32 s%d, s%d" % (S_TT, sg))
        A("s_cbranch_scc1 redo_loop%d" % g)
    prefetch(A)
    A(zero_a() + zero_o(0) + zero_p())
    A("s_branch att_w0")
```

```python
import sys, math, struct
from asmlib import *
from sched import *

from defs import *

class K:
    def __init__(self, A, name, opts):
        self.A = A; self.name = name; self.opts = opts; self.nst = 0; self.stn = []
    def stamp(self, nm):
        o = self.opts
        if o.get("festamps") and nm not in ("start", "bar0", "s0", "s1", "s2", "s3", "s4", "s5", "fe", "kvf", "aux", "end"): return
        if not o.get("festamps") and nm in ("bar0", "a_pf"): return
        if o.get("stamps") or o.get("cyc"):
            k = STAMPS[self.nst]; self.nst += 1; self.stn.append(nm)
            self.A("%s s[%d:%d]" % ("s_memrealtime" if o.get("stamps") else "s_memtime", k, k + 1))

def prologue(k):
    A = k.A
    A("s_cmp_ge_u32 s2, 256")
    A("s_cbranch_scc1 %s_end" % k.name)
    A("s_load_dwordx8 s[64:71], s[0:1], 0")
    A("s_load_dwordx2 s[72:73], s[0:1], 32")
    A("s_load_dwordx4 s[76:79], s[0:1], 104")
    A("s_load_dwordx2 s[%d:%d], s[0:1], 56" % (S_PR, S_PR + 1))
    A("s_load_dwordx2 s[%d:%d], s[0:1], 88" % (S_PG, S_PG + 1))
    A("v_lshrrev_b32 v26, 6, v0")
    A("v_and_b32 v1, 63, v0")
    A("v_readfirstlane_b32 s3, v26")
    A("s_and_b32 s46, s2, 7")
    A("s_lshr_b32 s47, s2, 3")
    A("s_lshl_b32 s4, s46, 2")
    A("s_and_b32 s48, s47, 3")
    A("s_add_u32 s4, s4, s48")
    A("s_lshr_b32 s5, s47, 2")
    A("v_lshrrev_b32 v27, 4, v1")
    A("v_lshrrev_b32 v28, 3, v1")
    A("v_lshl_add_u32 v19, v26, 5, v28")
    A("v_lshlrev_b32 v19, 13, v19")
    A("v_and_b32 v20, 1, v27")
    A("v_lshlrev_b32 v20, 1, v20")
    A("v_and_b32 v23, 7, v1")
    A("v_xor_b32 v21, v23, v20")
    for n in range(4):
        if n & 1:
            A("v_xor_b32 v22, 4, v21")
            A("v_lshl_add_u32 v22, v22, 4, v19")
        else:
            A("v_lshl_add_u32 v22, v21, 4, v19")
        A("v_add_u32 v%d, %d, v22" % (V_OFFW + n, (65536 - 1024) * n))
    A("v_lshlrev_b32 v19, 10, v28")
    A("v_xor_b32 v21, v23, v27")
    for n in range(4):
        if n & 1:
            A("v_xor_b32 v22, 4, v21")
            A("v_lshl_add_u32 v22, v22, 4, v19")
        else:
            A("v_lshl_add_u32 v22, v21, 4, v19")
        A("v_add_u32 v%d, %d, v22" % (V_OFFX + n, 7168 * n))
    A("s_lshl_b32 s%d, s3, 12" % S_WM)
    A("s_lshl_b32 s%d, s4, 8" % S_WOFF)
    A("s_mul_i32 s%d, s3, 24576" % S_XM)
    A("s_add_u32 s%d, s%d, %d" % (S_XM, S_XM, XB))
    A("s_lshl_b32 s%d, s5, 18" % S_KROW)
    A("s_lshl_b32 s46, s3, 16")
    A("s_add_u32 s%d, s%d, s46" % (S_KROW, S_KROW))
    A("s_add_u32 s%d, s%d, 32768" % (S_KROW + 1, S_KROW))
    A("s_waitcnt lgkmcnt(0)")
    srd(A, SRD_UK, PTR + 6, 4 << 20)
    srd(A, SRD_C, PTR + 2, 2 << 20)

def prologue2(k):
    A = k.A
    A("s_lshl_b32 s%d, s5, 2" % S_GS)
    A("s_add_u32 s%d, s%d, s3" % (S_GS, S_GS))
    A("s_sub_u32 s%d, 63, s%d" % (S_GL, S_GS))
    A("s_lshl_b32 s%d, s%d, 15" % (S_QROW, S_GS))
    A("s_lshl_b32 s%d, s%d, 15" % (S_QROW + 1, S_GL))
    A("s_lshl_b32 s46, s4, 6")
    A("s_lshl_b32 s47, s5, 3")
    A("s_add_u32 s46, s46, s47")
    A("s_lshl_b32 s47, s3, 1")
    A("s_add_u32 s46, s46, s47")
    A("s_lshl_b32 s%d, s46, 14" % S_KV)
    A("s_mov_b32 s%d, %s" % (S_SC, f32hex(QSCALE)))
    A("v_bfe_u32 v18, v1, 2, 2")
    A("v_lshl_add_u32 v19, v27, 3, v18")
    A("v_lshlrev_b32 v19, 7, v19")
    A("v_and_b32 v21, 3, v1")
    A("v_lshl_add_u32 v19, v21, 3, v19")
    A("v_lshrrev_b32 v18, 1, v18")
    A("v_add_u32 v18, v18, v20")
    for dt in range(4):
        A("v_xor_b32 v21, %d, v18" % dt)
        A("v_lshl_add_u32 v%d, v21, 5, v19" % (V_WADDR + dt))
    A("v_and_b32 v21, 15, v1")
    A("v_lshlrev_b32 v21, 7, v21")
    A("v_add_u32 v21, s%d, v21" % S_XM)
    A("v_bfe_u32 v23, v1, 1, 3")
    A("v_xor_b32 v23, v23, v27")
    A("v_lshl_add_u32 v%d, v23, 4, v21" % V_XADDR)
    A("v_xor_b32 v23, 4, v23")
    A("v_lshl_add_u32 v%d, v23, 4, v21" % (V_XADDR + 1))
    A("v_lshlrev_b32 v%d, 4, v1" % V_L16)
    srd(A, SRD_UV, PTR + 8, 4 << 20)
    srd(A, SRD_X, PTR + 0, 2 << 20)
    srd(A, SRD_WQ, PTR + 4, 4 << 20)
    srd(A, SRD_WS, PTR + 14, WS_SIZE)
    srd(A, SRD_DBG, PTR + 12, 256)

def w_dma(gam):
    sig = gam >> 2
    sw = (SRD_UK, SRD_UV, SRD_WQ)[sig >> 1]
    out = ["s_add_u32 m0, s%d, %d" % (S_WM, (gam & 3) * 16384),
           "s_add_u32 s%d, s%d, %d" % (S_T0, S_WOFF, (gam & 3) * 128 * 8192 + (sig & 1) * 128)]
    for n in range(4):
        out.append(("buffer_load_dwordx4 v%d, %s, s%d offen offset:%d lds" % (V_OFFW + n, sr(sw, 4), S_T0, 1024 * n), ("w", gam)))
    return out

def x_dma(ph, c):
    sx, rows = (SRD_C, S_KROW) if ph == 0 else (SRD_X, S_QROW)
    out = []
    for hf in range(2):
        out.append("s_add_u32 m0, s%d, %d" % (S_XM, (c % 3) * 8192 + hf * 4096))
        out.append("s_add_u32 s%d, s%d, %d" % (S_T0, rows + hf, 128 * c))
        for n in range(4):
            out.append(("buffer_load_dwordx4 v%d, %s, s%d offen offset:%d lds" % (V_OFFX + n, sr(sx, 4), S_T0, 1024 * n), ("x", ph, c)))
    return out

def x_reads(c):
    return ["ds_read_b128 %s, v%d offset:%d" % (ar(16 * (2 * c + ksl) + 4 * rt, 4), V_XADDR + ksl, (c % 3) * 8192 + 2048 * rt)
            for ksl in range(2) for rt in range(4)]

def w_reads(kap):
    gam = kap >> 2
    off = (gam & 3) * 16384 + (kap & 3) * 4096
    wf = WF + 16 * (kap & 1)
    return ["ds_read_b64_tr_b16 %s, v%d offset:%d" % (vr(wf + 4 * dt + 2 * q, 2), V_WADDR + dt, off + 512 * q)
            for dt in range(4) for q in range(2)]

def acc_tile(sig, rt, dt):
    base = ACC + 64 * (sig & 1)
    if sig >> 1 == 1:
        return base + (((rt >> 1) * 4 + dt) * 2 + (rt & 1)) * 4
    return base + rt * 16 + dt * 4

def epi(sig, sc1):
    out = []
    base = ACC + 64 * (sig & 1)
    if sig < 2:
        for kbl in range(2):
            out.append("s_add_u32 s%d, s%d, %d" % (S_T1, S_KV, kbl * 16384 + sig * 4096))
            for dsl in range(2):
                for kt in range(2):
                    t = base + (kbl * 2 + kt) * 16 + dsl * 8
                    for i in range(8):
                        out.append("v_mul_f32 v%d, s%d, v%d" % (t + i, S_SC, t + i))
                    out += cvt8(t)
                    out.append(("buffer_store_dwordx4 %s, v%d, %s, s%d offen offset:%d%s" % (vr(t, 4), V_L16, sr(SRD_WS, 4), S_T1, (dsl * 2 + kt) * 1024, sc1), ("st", sig)))
    elif sig < 4:
        for kbl in range(2):
            out.append("s_add_u32 s%d, s%d, %d" % (S_T1, S_KV, kbl * 16384 + 8192 + (sig & 1) * 4096))
            for dt in range(4):
                t = base + (kbl * 4 + dt) * 8
                out += cvt8(t)
                out.append(("buffer_store_dwordx4 %s, v%d, %s, s%d offen offset:%d%s" % (vr(t, 4), V_L16, sr(SRD_WS, 4), S_T1, dt * 1024, sc1), ("st", sig)))
    else:
        for rt in range(4):
            for dsl in range(2):
                t = base + rt * 16 + dsl * 8
                out += cvt8(t)
                for i in range(4):
                    out.append("v_accvgpr_write_b32 a%d, v%d" % (qfrag(rt, (sig & 1) * 2 + dsl) + i, t + i))
    return out

def frontend(k, hooks=None):
    A = k.A; opts = k.opts
    hooks = hooks or {}
    sc1 = "" if opts.get("nosc1") else " sc1"
    A(w_dma(0))
    A(x_dma(0, 0))
    prologue2(k)
    A(x_dma(0, 1))
    A(w_dma(1))
    A(x_dma(0, 2))
    A(w_dma(2))
    A(w_dma(3))
    if "pro" in hooks: hooks["pro"](A)
    A(("WAITVM", ("x", 0, 0)))
    A("s_barrier")
    k.stamp("bar0")
    A(x_reads(0))
    A(w_reads(0))
    A("s_waitcnt lgkmcnt(8)")
    A(x_dma(0, 3))
    A("s_waitcnt lgkmcnt(0)")
    qm = Q(cap=2, first=1)
    qe = Q(cap=2, first=4)
    xr = {}; xd = {}
    for c in range(1, 8): xr[2 * c - 2] = (0, c)
    for c in range(4, 8): xd[2 * (c - 3) - 1] = (0, c)
    for c, kp in enumerate((18, 26, 34, 51, 54, 57, 61, 65)): xd[kp] = (1, c)
    for c, kp in enumerate((50, 52, 54, 60, 62, 64, 70, 72)): xr[kp] = (1, c)
    for kap in range(96):
        sig, ks = kap >> 4, kap & 15
        if ks == 0 and sig > 0:
            if opts.get("festamps"): k.stamp("s%d" % (sig - 1))
            assert not qe.items
        wf = WF + 16 * (kap & 1)
        mf = []
        for dt in range(4):
            for rt in range(4):
                acc = vr(acc_tile(sig, rt, dt), 4)
                c = "0" if ks == 0 else acc
                a, b = vr(wf + 4 * dt, 4), ar(16 * ks + 4 * rt, 4)
                if sig >> 1 == 1: a, b = b, a
                mf.append("%s %s, %s, %s, %s" % (MF, acc, a, b, c))
        tags = []
        if kap in xr: tags.append(("x",) + xr[kap])
        bar = (kap & 3) == 3 and kap < 95
        if bar: tags.append(("w", (kap >> 2) + 1))
        tags += hooks.get(("tag", kap), [])
        if opts.get("nowdma"): tags = [t for t in tags if t[0] != "w" or t[1] < 4]
        if opts.get("nox2"): tags = [t for t in tags if t[0] != "x" or t[1] == 0]
        for t in tags: assert not any(isinstance(x, tuple) and x[1] == t for x in qm.items + qe.items), (kap, t)
        s1 = {}
        if tags:
            t = min(tags, key=lambda t: A.vm_after(t))
            s1[0] = [("WAITVM", t)]
        if bar and not opts.get("nobar"): s1[1] = ["s_barrier"]
        if ("pre", kap) in hooks: s1[2] = hooks[("pre", kap)]
        def lastw():
            assert not qr.items
            return ["s_waitcnt lgkmcnt(0)"]
        if kap < 95: s1[15] = lastw
        qr = Q(w_reads(kap + 1) if kap < 95 else [], cap=2, first=1 if bar else 0)
        if kap in xr: qr.add(x_reads(xr[kap][1]))
        if bar and (kap >> 2) + 4 < 24 and not opts.get("nowdma"): qm.add(w_dma((kap >> 2) + 4))
        if kap in xd and not (opts.get("nox2") and xd[kap][0] == 1): qm.add(x_dma(*xd[kap]))
        qm.add(hooks.get(("qm", kap), []))
        if ks == (3 if sig == 5 else 0) and sig > 0:
            e = epi(sig - 1, sc1)
            if opts.get("nostore"): e = [x for x in e if not isinstance(x, tuple)]
            if opts.get("noepi"): e = []
            qe.add(e)
        qs = [qr, qm, qe]
        if kap in hooks: qs += hooks[kap](k)
        vg = opts.get("vg0", 2) if kap < 12 else opts.get("vg", 3)
        qm.first = 2 if bar else 0
        left = step(A, mf, qs, s1=s1, vmgap=vg)
        assert not qr.items
        if left: print("; kstep", kap, "leftover", left, file=sys.stderr)
    if opts.get("festamps"): k.stamp("s5")
    assert not qm.items and not qe.items
    A("s_nop 7")
    A(epi(5, sc1))

def dump_stamps(k):
    A = k.A
    regs_ = STAMPS[:k.nst]
    A("s_waitcnt lgkmcnt(0)")
    A("s_lshl_b32 s46, s2, 9")
    A("s_lshl_b32 s47, s3, 7")
    A("s_add_u32 s46, s46, s47")
    A("s_add_u32 s46, s46, %d" % STAMP_OFF)
    for i, r in enumerate(regs_):
        A("v_mov_b32 v%d, s%d" % (32 + 2 * i, r))
        A("v_mov_b32 v%d, s%d" % (33 + 2 * i, r + 1))
    A("v_mov_b32 v31, 0")
    A("s_mov_b64 exec, 1")
    for i in range((len(regs_) + 1) // 2):
        A("buffer_store_dwordx4 %s, v31, %s, s46 offen offset:%d" % (vr(32 + 4 * i, 4), sr(SRD_WS, 4), 16 * i))
    A("s_mov_b64 exec, -1")

def kernel(A, name, opts):
    k = K(A, name, opts)
    kernel_header(A, name)
    k.stamp("start")
    prologue(k)
    frontend(k)
    if opts.get("dumpq"):
        A("s_lshl_b32 s46, s2, 2")
        A("s_add_u32 s46, s46, s3")
        A("s_lshl_b32 s46, s46, 14")
        A("s_add_u32 s46, s46, %d" % DBG_OFF)
        for rt in range(4):
            A("s_add_u32 s47, s46, %d" % (rt * 4096))
            for ds in range(4):
                A("buffer_store_dwordx4 %s, v%d, %s, s47 offen offset:%d" % (ar(qfrag(rt, ds), 4), V_L16, sr(SRD_WS, 4), ds * 1024))
    if opts.get("stamps") or opts.get("cyc"):
        A("s_waitcnt vmcnt(0)")
        k.stamp("end")
        dump_stamps(k)
    A.label("%s_end" % name)
    A("s_endpgm")
    return k

HEAD = open("gated_mix__compressed_kv_cla__moe_arch_mod__prompt.s.ref").read().split("; Override launch")[0]
def build(out, opts):
    A = Asm()
    A.raw('.amdgcn_target "amdgcn-amd-amdhsa--gfx950"')
    A.raw(".text")
    name = "gated_mix__compressed_kv_cla__moe_arch_mod__prompt_kernel"
    k = kernel(A, name, opts)
    errs, n = check(A)
    for e in errs: print(e, file=sys.stderr)
    print("instructions:", n, "hazards:", len(errs), "maxout:", A.maxout, file=sys.stderr)
    l = "; @launch kernel=%s grid=(256,1,1) block=(256,1,1) lds=163840\n; stamps: %s" % (name, " ".join(k.stn))
    open(out, "w").write(HEAD + l + "\n" + A.text() + '.section .rodata,"a"\n' + kernel_desc(name, 512, 256))
if __name__ == "__main__":
    opts = {k.split('=')[0]: (int(k.split('=')[1]) if '=' in k else True) for k in sys.argv[2:]}
    build(sys.argv[1], opts)
```

```python
from asmlib import *
class Q:
    def __init__(self, items=None, cap=2, first=0, period=0, eager=False):
        self.items = list(items or []); self.cap = cap; self.first = first
        self.period = period; self.cool = 0; self.eager = eager
    def add(self, items): self.items += list(items)
    def __len__(self): return len(self.items)

def head(x):
    return x[0] if isinstance(x, tuple) else x
def issalu(x):
    if isinstance(x, list): return False
    s = head(x)
    return s in ("WAITVM", "WAITLG") or s.startswith("s_")
def isvm(x):
    if isinstance(x, list): return any(isvm(y) for y in x)
    return head(x).startswith(("buffer_", "global_"))
def cost(ins):
    if isinstance(ins, list): return sum(cost(x) for x in ins)
    s = head(ins)
    if s == "RAW": return len(ins[1])
    if s.startswith(("v_exp", "v_rcp", "v_log", "v_readlane", "buffer_", "global_", "v_dot2")): return 2
    return 1
vmshared = [0]
def step(A, mfmas, queues, pre=None, post=None, cap=2, drain=(), vmgap=1, s1=None):
    pre = pre or {}; post = post or {}; s1 = s1 or {}
    ev = lambda v: v() if callable(v) else v
    over = 0
    if 0 in pre: A(ev(pre[0]))
    for i, m in enumerate(mfmas):
        A(m)
        room = cap
        if vmshared[0] > 0: vmshared[0] -= 1
        for q in queues:
            if q.cool > 0: q.cool -= 1
        n0 = len(A.lines)
        if i in s1: A(ev(s1[i]))
        if (i + 1) in pre: A(ev(pre[i + 1]))
        n = len([l for l in A.lines[n0:] if not l.strip().endswith(":")])
        if n: room -= n - 1
        else:
            for q in queues:
                if i >= q.first and q.items and issalu(q.items[0]):
                    if ' m0,' in head(q.items[0])[:16]: vmshared[0] = max(vmshared[0], 1)
                    A(q.items.pop(0)); break
        if i in post:
            A(post[i]); room -= sum(cost(x) for x in post[i])
        for q in queues:
            if i < q.first: continue
            used = 0
            while q.items:
                it = q.items[0]
                c = cost(it); vm = isvm(it)
                if issalu(it) and not q.eager: break
                if vm and (q.cool > 0 or vmshared[0] > 0): break
                if c > cap and room == cap and used == 0: pass
                elif room < c or used + c > q.cap: break
                A(q.items.pop(0)); room -= c; used += c
                if vm: q.cool = q.period; vmshared[0] = vmgap
        if room < 0: over -= room
    left = 0
    for q in drain:
        left += len(q.items)
        for x in q.items: A(x)
        q.items = []
    return left + over
```

```python
import re
class Asm:
    def __init__(self):
        self.lines = []
        self._uid = 0
        self.vm = []
        self.out = 0; self.maxout = 0
        self.lg = []
        self.alt = None
    def __call__(self, s):
        if isinstance(s, (list,)):
            for x in s: self(x)
            return
        tag = None
        if isinstance(s, tuple):
            if s[0] == "RAW":
                for x in s[1]: self.lines.append("    " + x)
                return
            if s[0] == "WAITVM":
                n = min(self.vm_after(s[1]), 63)
                self.out = min(self.out, n)
                s = "s_waitcnt vmcnt(%d)%s" % (n, (" " + s[2]) if len(s) > 2 else "")
            elif s[0] == "WAITLG":
                idx = [i for i, t in enumerate(self.lg) if t == s[1]]
                if not idx: return
                n = len(self.lg) - 1 - idx[-1]
                self.lg = self.lg[idx[-1] + 1:]
                s = "s_waitcnt lgkmcnt(%d)" % min(n, 15)
            else:
                s, tag = s
        for ln in s.split("\n"):
            ln = ln.strip()
            if ln:
                if ln.startswith("buffer_") or ln.startswith("global_"):
                    self.vm.append(tag)
                    if self.alt is not None: self.alt.append(tag)
                    self.out += 1
                    self.maxout = max(self.maxout, self.out)
                if ln.startswith("ds_"): self.lg.append(tag)
                if ln.startswith("s_waitcnt") and "lgkmcnt(0)" in ln: self.lg = []
                self.lines.append("    " + ln)
    def vm_after(self, tag):
        idx = [i for i, t in enumerate(self.vm) if t == tag]
        assert idx, "no vmem op with tag %s" % str(tag)
        n = len(self.vm) - 1 - idx[-1]
        if self.alt is not None:
            idx = [i for i, t in enumerate(self.alt) if t == tag]
            if idx: n = min(n, len(self.alt) - 1 - idx[-1])
        return n
    def label(self, l):
        self.lines.append(l + ":")
    def raw(self, s):
        self.lines.append(s)
    def uid(self, p="L"):
        self._uid += 1
        return "%s_%d" % (p, self._uid)
    def text(self):
        return "\n".join(self.lines) + "\n"

def vr(b, n=1):
    return "v%d" % b if n == 1 else "v[%d:%d]" % (b, b + n - 1)
def ar(b, n=1):
    return "a%d" % b if n == 1 else "a[%d:%d]" % (b, b + n - 1)
def sr(b, n=1):
    return "s%d" % b if n == 1 else "s[%d:%d]" % (b, b + n - 1)

def cost(ins):
    s = ins[0] if isinstance(ins, tuple) else ins
    if s.startswith(("v_exp", "v_rcp", "v_log")): return 2
    return 1

def fill(A, mfmas, streams, cap=2, pre=None, post=None):
    qs = [[st[0], list(st[1]), st[2] if len(st) > 2 else cap] for st in streams]
    for i, m in enumerate(mfmas):
        if pre and i in pre:
            A(pre[i])
        A(m)
        room = cap
        if pre and (i + 1) in pre:
            room -= sum(cost(x) for x in pre[i + 1])
        if post and i in post:
            A(post[i]); room -= sum(cost(x) for x in post[i])
        for q in qs:
            if i < q[0]: continue
            used = 0
            while q[1] and room >= cost(q[1][0]) and used + cost(q[1][0]) <= q[2]:
                x = q[1].pop(0)
                A(x); room -= cost(x); used += cost(x)
    left = 0
    for q in qs:
        for x in q[1]:
            A(x); left += 1
    return left

def kernel_header(A, name):
    A.raw(".globl %s" % name)
    A.raw(".p2align 8")
    A.raw(".type %s,@function" % name)
    A.label(name)

def kernel_desc(name, nvgpr, accum, nsgpr=102):
    return """.p2align 6
.amdhsa_kernel %s
  .amdhsa_next_free_vgpr %d
  .amdhsa_next_free_sgpr %d
  .amdhsa_accum_offset %d
  .amdhsa_group_segment_fixed_size 0
  .amdhsa_kernarg_size 120
  .amdhsa_user_sgpr_count 2
  .amdhsa_user_sgpr_kernarg_segment_ptr 1
  .amdhsa_system_sgpr_workgroup_id_x 1
.end_amdhsa_kernel
""" % (name, nvgpr, nsgpr, accum)

def srd(A, d, base, nbytes):
    A("s_mov_b32 s%d, s%d" % (d, base))
    A("s_and_b32 s%d, s%d, 0xffff" % (d + 1, base + 1))
    A("s_mov_b32 s%d, 0x%x" % (d + 2, nbytes))
    A("s_mov_b32 s%d, 0x00020000" % (d + 3))

_rx = re.compile(r"^(-|\|)?([vas])(\d+)\|?$|^(-|\|)?([vas])\[(\d+):(\d+)\]\|?$")
def regs(op):
    op = op.strip()
    if op.startswith("-|"): op = op[1:]
    m = _rx.match(op)
    if not m:
        if op in ("vcc", "vcc_lo", "vcc_hi"): return {("s", 106), ("s", 107)}
        if op == "exec": return {("s", 126), ("s", 127)}
        if op == "m0": return {("s", 124)}
        return set()
    if m.group(2):
        return {(m.group(2), int(m.group(3)))}
    return {(m.group(5), i) for i in range(int(m.group(6)), int(m.group(7)) + 1)}

TRANS = ("v_exp_", "v_log_", "v_rcp_", "v_rsq_", "v_sqrt_", "v_sin_", "v_cos_")
class Ins:
    def __init__(self, text):
        self.text = text
        t = text.split(";")[0].strip()
        parts = t.split(None, 1)
        self.op = parts[0]
        rest = parts[1] if len(parts) > 1 else ""
        rest = re.sub(r"\s(op_sel\w*|neg_\w+):\[[^\]]*\]", "", rest)
        ops = [o.strip() for o in rest.split(",")] if rest else []
        if ops:
            last = ops[-1].split()
            self.mods = last[1:]
            ops[-1] = last[0] if last else ""
        else:
            self.mods = []
        self.ops = ops
        op = self.op
        self.w = set(); self.r = set(); self.srcc = set(); self.ab = set(); self.sdata = set()
        self.mfma = op.startswith("v_mfma")
        self.valu = op.startswith("v_") and not self.mfma
        self.vmem = op.startswith(("buffer_", "global_"))
        self.ds = op.startswith("ds_")
        self.salu = op.startswith("s_")
        self.trans = op.startswith(TRANS)
        self.ws = 1
        if op == "s_nop": self.ws = int(ops[0]) + 1
        if self.mfma:
            self.w = regs(ops[0]); self.ab = regs(ops[1]) | regs(ops[2]); self.srcc = regs(ops[3]); self.r = self.ab | self.srcc
            self.passes = 8 if "32x32x16" in op else 4
        elif self.valu:
            if op.startswith("v_cmp"):
                self.w = regs(ops[0]); rs = ops[1:]
                if op.startswith("v_cmpx"): self.w |= regs("exec")
            elif op.startswith("v_permlane") and "swap" in op:
                self.w = regs(ops[0]) | regs(ops[1]); rs = ops
            elif "_co_" in op:
                self.w = regs(ops[0]) | regs(ops[1]); rs = ops[2:]
            else:
                self.w = regs(ops[0]); rs = ops[1:]
                if op.startswith(("v_fmac", "v_dot2c", "v_writelane", "v_pk_fmac")) or "dpp" in op: rs = ops
            for o in rs: self.r |= regs(o)
            if op.startswith("v_cndmask") and len(ops) == 3: self.r |= regs("vcc")
        elif self.vmem:
            lds = "lds" in self.mods
            if "store" in op or ("atomic" in op):
                if op.startswith("buffer_"):
                    self.sdata = regs(ops[0]); rs = ops
                else:
                    self.sdata = regs(ops[1]); rs = ops
                for o in rs: self.r |= regs(o)
            elif op.startswith("buffer_inv") or op.startswith("buffer_wbl2"):
                pass
            elif lds:
                for o in ops: self.r |= regs(o)
                self.r |= regs("m0")
            else:
                self.w = regs(ops[0])
                for o in ops[1:]: self.r |= regs(o)
            self.lds = lds
        elif self.ds:
            if "write" in op:
                for o in ops: self.r |= regs(o)
            else:
                self.w = regs(ops[0])
                for o in ops[1:]: self.r |= regs(o)
        elif self.salu:
            if op.startswith(("s_cmp", "s_cbranch", "s_branch", "s_waitcnt", "s_barrier", "s_nop", "s_endpgm", "s_sleep", "s_setprio", "s_bitcmp")):
                for o in ops: self.r |= regs(o)
            else:
                if ops: self.w = regs(ops[0])
                for o in ops[1:]: self.r |= regs(o)

def isv(rs): return {x for x in rs if x[0] in "va"}
def iss(rs): return {x for x in rs if x[0] == "s"}

def need(p, c):
    n = 0
    if p.mfma:
        k = {4: (6, 8, 3), 8: (10, 12, 7)}[p.passes]
        if c.mfma:
            if p.w & c.ab: n = max(n, k[1])
            if p.w & c.srcc and p.w != c.srcc: n = max(n, k[0])
        elif c.valu or c.vmem or c.ds:
            if p.w & (c.r | c.w): n = max(n, k[1])
            if c.valu and (p.srcc & c.w): n = max(n, k[2])
    elif p.valu:
        if c.mfma and (isv(p.w) & c.r): n = max(n, 2)
        if p.trans and c.valu and (p.w & c.r): n = max(n, 1)
        if p.trans and (c.vmem or c.ds) and (p.w & c.r): n = max(n, 1)
        if c.vmem and (iss(p.w) & c.r): n = max(n, 5)
        if c.valu and (iss(p.w) & c.r): n = max(n, 2)
        if c.valu and c.op.startswith(("v_readlane", "v_writelane")) and (iss(p.w) & c.r): n = max(n, 4)
        if c.valu and c.op.startswith(("v_readlane", "v_readfirstlane")) and (isv(p.w) & c.r): n = max(n, 1)
        if c.valu and c.op.startswith("v_permlane") and (isv(p.w) & c.r): n = max(n, 2)
        if c.valu and ("dpp" in c.op or any(m.startswith(("row_", "quad_", "wave_")) for m in c.mods)) and (isv(p.w) & c.r): n = max(n, 2)
        if ("s", 126) in p.w and c.mfma: n = max(n, 4)
        if c.salu and (iss(p.w) & c.r): n = max(n, 1)
    elif p.vmem and p.sdata and len(p.sdata) >= 3:
        if (p.sdata & c.w): n = max(n, 2 if c.valu else 1)
    elif p.salu:
        if ("s", 124) in p.w and c.vmem and getattr(c, "lds", False): n = max(n, 1)
    return n

def check_seq(seq, where=""):
    errs = []
    for i, c in enumerate(seq):
        d = 0
        for k in range(i - 1, max(-1, i - 14), -1):
            p = seq[k]
            n = need(p, c)
            if n > d:
                errs.append("%s hazard need %d have %d:\n   %s\n   %s" % (where, n, d, p.text, c.text))
            d += p.ws
            if d >= 12: break
    return errs

def check(A):
    ins = []; labels = {}
    for ln in A.lines:
        s = ln.strip()
        if not s or s.startswith((".", ";")): continue
        if s.endswith(":"):
            labels[s[:-1]] = len(ins); continue
        ins.append(Ins(s))
    errs = []
    seg = []
    for x in ins:
        seg.append(x)
        if x.op in ("s_branch", "s_endpgm", "s_setpc_b64"):
            errs += check_seq(seg, "lin"); seg = []
    errs += check_seq(seg, "lin")
    for i, x in enumerate(ins):
        if x.op.startswith(("s_cbranch", "s_branch")):
            t = labels[x.ops[0]]
            lo = i
            while lo > 0 and i - lo < 13 and ins[lo - 1].op not in ("s_branch", "s_endpgm"): lo -= 1
            hi = t
            while hi < len(ins) and hi - t < 13:
                hi += 1
                if ins[hi - 1].op in ("s_branch", "s_endpgm"): break
            errs += check_seq(ins[lo:i + 1] + ins[t:hi], "br->" + x.ops[0])
    errs = list(dict.fromkeys(errs))
    return errs, len(ins)
```

```python
from asmlib import *
from sched import *
from defs import *

def qk(grp, Sb, zero=False):
    g = 0 if grp == "S" else 1
    out = []
    for ds in range(4):
        for qt in range(2):
            for kt in range(2):
                d = vr(Sb + (qt * 2 + kt) * 4, 4)
                c = d if ds else ("0" if zero else vr(CIN + g * 8 + qt * 4, 4))
                out.append("%s %s, %s, %s, %s" % (MF, d, ar(KF + (ds * 2 + kt) * 4, 4), ar(qfrag(g * 2 + qt, ds), 4), c))
    return out

def pv(grp, Pb, vf=VF):
    g = 0 if grp == "S" else 1
    out = []
    for dt in range(8):
        for qt in range(2):
            d = vr(OREG + g * 64 + (qt * 8 + dt) * 4, 4)
            out.append("%s %s, %s, %s, %s" % (MF, d, ar(vf + dt * 4, 4), vr(Pb + qt * 4, 4), d))
    for qt in range(2):
        d = ar(LREG + g * 8 + qt * 4, 4)
        out.append("%s %s, %s, %s, %s" % (MF, d, ar(ONES, 4), vr(Pb + qt * 4, 4), d))
    return out

def sm(Sb, Pb):
    m = {}
    for i in range(16): m.setdefault(2 * i, []).append("v_exp_f32 v%d, v%d" % (Sb + i, Sb + i))
    for k in range(8): m.setdefault(4 * k + 3, []).append("v_cvt_pk_bf16_f32 v%d, v%d, v%d" % (Pb + k, Sb + 2 * k, Sb + 2 * k + 1))
    return m
def sm1(Sb, Pb): return {g: v for g, v in sm(Sb, Pb).items() if g < 16}
def sm2(Sb, Pb): return {g - 16: v for g, v in sm(Sb, Pb).items() if g >= 16}

def rd(dst, off, tag, va=V_RD, grp=4):
    return [("ds_read_b128 %s, v%d offset:%d" % (ar(dst + 4 * f, 4), va, off + 1024 * f), (tag, f // grp)) for f in range(8)]

def mask(Sb):
    out = []
    for r in range(4): out.append("v_cndmask_b32 v%d, v%d, v%d, %s" % (Sb + r, Sb + r, V_NEG, sr(MSK + 2 * r, 2)))
    for r in range(4): out.append("v_mov_b32 v%d, v%d" % (Sb + 4 + r, V_NEG))
    for r in range(4): out.append("v_cndmask_b32 v%d, v%d, v%d, %s" % (Sb + 12 + r, Sb + 12 + r, V_NEG, sr(MSK + 2 * r, 2)))
    return out

RDL = "v_readlane_b32 s%d, v%d, s%d" % (S_DOFF, V_TAB, S_TT)
M0A = "s_add_u32 m0, s%d, s%d" % (S_SLOT, S_W8K)
M0B = "s_add_u32 m0, m0, 0x1000"
TTI = "s_add_u32 s%d, s%d, 1" % (S_TT, S_TT)
VDM = "v_add_u32 v%d, s%d, v%d" % (V_DM, S_DOFF, V_L16)
VRD = "v_xor_b32 v%d, s%d, v%d" % (V_RD, S_SLOT, V_L16X)
SLA = ["s_add_u32 s%d, s%d, 0x8000" % (S_SLOT, S_SLOT), "s_and_b32 s%d, s%d, 0x1ffff" % (S_SLOT, S_SLOT)]
def dmai(n):
    return "buffer_load_dwordx4 v%d, %s, %s offen offset:%d sc1 lds" % (V_DM, sr(SRD_WS, 4), "s%d" % S_4K if n >= 4 else "0", 1024 * (n & 3))
CARRY = "v_cvt_pk_bf16_f32 v%d, v%d, v%d" % (P0 + 3, S0 + 6, S0 + 7)
WAITW = "s_waitcnt vmcnt(16) lgkmcnt(0)"

def smpost():
    post = {}
    for base, m in ((0, sm2(S0, P0)), (18, sm1(S1, P1)), (34, sm2(S1, P1)), (52, sm1(S0, P0))):
        for g, v in m.items(): post[base + g] = list(v)
    assert post[67] == [CARRY]
    del post[67]
    return post

def window(A, prev, cur, mask_even=False, tail=None, br=None):
    gp = "S" if prev == "D" else "L"
    gc = "S" if cur == "D" else "L"
    mf = pv("L", P1) + qk(gc, S0) + pv(gp, P0) + qk("L", S1)
    post = smpost()
    def put(g, x): post.setdefault(g, []).append(x)
    put(1, CARRY); put(1, VRD)
    K1 = rd(KF, 0, "k1", grp=2); V1 = rd(VF, 16384, "v1", grp=2); K2 = rd(KF, 8192, "k2", grp=2); V2 = rd(VF, 24576, "v2", grp=2)
    for g, x in zip((3, 5, 5, 11, 13, 13, 15, 16), K1): put(g, x)
    for g, x in zip((16, 19, 19, 21, 25, 27, 27, 29), V1): put(g, x)
    if cur == "S":
        for g, x in zip((33, 35, 35, 37, 41, 43, 43, 45), K2): put(g, x)
    if prev == "S":
        for g, x in zip((49, 50, 50, 51, 51, 55, 57, 57), V2): put(g, x)
    put(7, VDM)
    for n, g in enumerate((9, 17, 23, 31, 39, 47, 53, 61)): put(g, dmai(n))
    put(65, RDL)
    s1 = {0: ["s_barrier"], 2: [SLA[0]], 3: [SLA[1]], 4: [M0A], 34: [M0B], 62: [TTI], 66: [WAITW]}
    for i, x in enumerate(tail or []): s1[65 - len(tail) + i + (1 if 65 - len(tail) + i >= 62 else 0)] = [x]
    if br: s1[67] = [br]
    pre = {}
    for ds in range(4):
        pre[18 + 4 * ds] = [("WAITLG", ("k1", ds))]
        pre[34 + 4 * ds] = [("WAITLG", ("v1", ds))]
        if cur == "S": pre[52 + 4 * ds] = [("WAITLG", ("k2", ds))]
    qx = Q(mask(S0) if mask_even else [], first=35)
    n = step(A, mf, [qx], pre=pre, post=post, s1=s1, drain=[qx])
    if n: print("window", prev, cur, "over", n, file=sys.stderr)

V_FL = 14
def ld_flags(tag="fl"):
    return ("buffer_load_dword v%d, v15, %s, s%d offen sc1" % (V_FL, sr(SRD_WS, 4), S_FB), tag)

def fin(A, k, prev, last):
    gp = "S" if prev == "D" else "L"
    A(["s_waitcnt vmcnt(8)", "s_barrier", CARRY, VRD] + SLA)
    A.vm = []
    qd = Q([ld_flags(), M0A, VDM] + [(dmai(n), "wc") for n in range(4)] + [M0B] + [(dmai(n), "wc") for n in range(4, 8)] + [TTI, RDL])
    qr = Q(rd(KF, 0, "k") + ["v_xor_b32 v%d, s%d, v%d" % (V_T, S_SLOT, V_L16X)])
    step(A, pv("L", P1), [qr, qd], post=sm2(S0, P0), drain=[qr])
    qr = Q(rd(VF, 16384, "v"))
    step(A, qk("L", S0), [qr, qd], pre={0: [("WAITLG", ("k", 0))], 8: [("WAITLG", ("k", 1))]}, post=sm1(S1, P1), drain=[qr])
    if prev == "S": qr = Q(rd(KF, 24576, "k"))
    else: qr = Q(rd(KF, 16384, "k", va=V_T))
    step(A, pv(gp, P0), [qr, qd], pre={0: [("WAITLG", ("v", 0))], 8: [("WAITLG", ("v", 1))]}, post=sm2(S1, P1), drain=[qr])
    lab = A.uid("nomask")
    A("s_cmp_lg_u32 s%d, 3" % S_W)
    A("s_cbranch_scc1 %s" % lab)
    A(mask(S0))
    A.label(lab)
    smq = []
    m = sm(S0, P0)
    for g in sorted(m): smq += m[g]
    ex = [x for x in smq if x.startswith("v_exp")]; cv = [x for x in smq if x.startswith("v_cvt")]
    order = ex[:3]
    for i in range(3, 16):
        order.append(ex[i])
        if i & 1: order.append(cv[(i - 3) >> 1])
    order += ["s_nop 0", cv[7]]
    qs = Q(order, eager=True)
    sel = [("WAITVM", "fl"), "v_cmp_eq_u32 vcc, 0, v%d" % V_FL, "s_waitcnt lgkmcnt(0)", "s_and_b32 s%d, vcc_lo, s%d" % (S_SOK, S_M4)]
    for hx in range(1, 4): sel.append("s_cselect_b32 s%d, s%d, s%d" % (S_T0 + hx, S_LIM, S_CS + hx))
    ql = Q(last)
    if prev == "S":
        qr = Q(rd(VF, 16384, "v", va=V_T), cap=1)
        step(A, pv("L", P1, vf=KF), [qs, qr, qd], pre={0: [("WAITLG", ("k", 0))], 8: [("WAITLG", ("k", 1))]}, drain=[qr, qs, qd], cap=3)
        A(sel)
        step(A, pv("L", P0), [ql])
    else:
        step(A, pv("L", P1), [qs, qd], drain=[qs, qd], cap=3)
        A(sel)
        step(A, pv("L", P0, vf=KF), [ql])
    return ql.items

def epi_list(grp, pk=False):
    g = 0 if grp == "S" else 1
    base = S_CTXS + g
    T = V_T
    o = []
    for qt in range(2):
        o.append("v_accvgpr_read_b32 v%d, a%d" % (T + qt, LREG + g * 8 + qt * 4))
    for qt in range(2):
        o.append("v_rcp_f32 v%d, v%d" % (T + 2 + qt, T + qt))
    o.append("v_max_f32 v%d, v%d, v%d" % (T, T, T + 1))
    o.append("v_cmp_nlt_f32 vcc, v%d, s%d" % (T, S_LIM))
    for ds in range(4):
        for qt in range(2):
            t = OREG + g * 64 + qt * 32 + ds * 8
            d = (FRS, FRL)[g] + 8 * ds + 4 * qt
            if not pk:
                for i in range(8): o.append("v_mul_f32 v%d, v%d, v%d" % (t + i, t + i, T + 2 + qt))
            for i in range(0, 8 if pk else 0, 2):
                o.append("v_pk_mul_f32 %s, %s, %s op_sel:[0,%d] op_sel_hi:[1,%d]" % (vr(t + i, 2), vr(t + i, 2), vr(T + 2, 2), qt, qt))
            for i in range(4): o.append("v_cvt_pk_bf16_f32 v%d, v%d, v%d" % (d + i, t + 2 * i, t + 2 * i + 1))
            if ds == 0 and qt == 0: o.append("s_or_b64 %s, %s, vcc" % (sr(S_BAD, 2), sr(S_BAD, 2)))
            o.append(("buffer_store_dwordx4 %s, v%d, %s, s%d offen offset:%d sc1" % (vr(d, 4), V_L16 if ds < 2 else V_L4K, sr(SRD_WS, 4), base, (ds & 1) * 2048 + qt * 1024), "cst"))
    return o
def epi_chk_mf(grp):
    f = (FRS, FRL)[grp == "L"]
    d = vr(V_T + 4, 4)
    return ["%s %s, %s, %s, %s" % (MF, d, vr(f + 8 * i, 4), vr(f + 8 * i + 4, 4), d if i else "0") for i in range(4)]
def epi_chk():
    T = V_T + 4
    return ["v_add_f32 v%d, |v%d|, |v%d|" % (T, T, T + 1), "v_add_f32 v%d, |v%d|, |v%d|" % (T + 2, T + 2, T + 3),
            "v_add_f32 v%d, v%d, v%d" % (T, T, T + 2), "v_cmp_ngt_f32 vcc, -v%d, v%d" % (V_NEG, T)]
BADOR = "s_or_b64 %s, %s, vcc" % (sr(S_BAD, 2), sr(S_BAD, 2))
def epilogue(A, grp):
    A(epi_list(grp, True))
    A("s_nop 0")
    A(epi_chk_mf(grp))
    A("s_nop 7")
    A(epi_chk())
    A("s_nop 0")
    A(BADOR)

def zero_a():
    return ["v_accvgpr_write_b32 a%d, 0" % r for r in list(range(VF, VF + 32)) + list(range(LREG, LREG + 16))]
def zero_o(g): return ["v_mov_b32 v%d, 0" % (OREG + 64 * g + r) for r in range(64)]
def zero_p(): return ["v_mov_b32 v%d, 0" % (P1 + r) for r in range(8)]

def setup():
    o = []
    T = V_T
    o += ["s_lshl_b32 s%d, s%d, 13" % (S_W8K, S_W), "s_movk_i32 s%d, 0x1000" % S_4K, "s_mov_b32 s%d, 0" % S_REDO,
          "s_mov_b32 s%d, 0x4e800000" % S_LIM]
    o += ["v_mov_b32 v%d, 0xff800000" % V_NEG, "v_xor_b32 v%d, 0x10000, v%d" % (V_L16X, V_L16)]
    for r in range(4): o.append("v_mov_b32 v%d, 0xff800000" % (V_M + r))
    o.append("v_mov_b32 v%d, 0x3f803f80" % T)
    for r in range(4):
        o.append("v_accvgpr_write_b32 a%d, v%d" % (ONES + r, T))
        o.append("v_accvgpr_write_b32 a%d, 0" % (ZERO + r))
    o += ["v_lshrrev_b32 v%d, 4, v%d" % (T, V_LANE), "v_lshlrev_b32 v%d, 2, v%d" % (T, T), "v_and_b32 v%d, 15, v%d" % (T + 1, V_LANE),
          "v_sub_u32 v%d, v%d, v%d" % (T + 1, T + 1, T)]
    for r in range(4):
        o.append("v_cmp_gt_i32 %s, %d, v%d" % (sr(MSK + 2 * r, 2), r, T + 1))
    o += ["s_lshl_b32 s%d, s%d, 5" % (S_X0, S_GS), "s_add_u32 s%d, s%d, s%d" % (S_X1, S_X0, S_H),
          "s_lshl_b32 s%d, s%d, 2" % (S_FB, S_X0), "s_add_u32 s%d, s%d, 0x%x" % (S_FB, S_FB, CTXF_OFF),
          "s_lshl_b32 s%d, s%d, 2" % (S_FA, S_X1), "s_add_u32 s%d, s%d, 0x%x" % (S_FA, S_FA, CTXF_OFF),
          "s_lshl_b32 s%d, s%d, 14" % (S_X1, S_X1), "s_add_u32 s%d, s%d, 0x%x" % (S_CTXS, S_X1, CTX_OFF),
          "s_add_u32 s%d, s%d, 0x2000" % (S_CTXL, S_CTXS)]
    for hx in range(1, 4):
        o += ["s_xor_b32 s%d, s%d, 0x%x" % (S_CS + hx, S_CTXS, hx << 14), "s_xor_b32 s%d, s%d, 0x%x" % (S_CL + hx, S_CTXL, hx << 14)]
    o += ["s_andn2_b32 s%d, s%d, 3" % (S_X0, S_H), "s_lshl_b32 s%d, 15, s%d" % (S_M4, S_X0),
          "v_add_u32 v%d, 0x1000, v%d" % (V_L4K, V_L16), "v_add_u32 v%d, 0x20000, v%d" % (V_LW, V_L16),
          "v_and_b32 v15, 31, v%d" % V_LANE, "v_lshlrev_b32 v15, 2, v15"]
    o += ["s_lshr_b32 s%d, s%d, 1" % (S_X0, S_W),
          "v_subrev_u32 v%d, s%d, v%d" % (T, S_X0, V_LANE),
          "s_lshl_b32 s%d, s%d, 2" % (S_X1, S_J), "s_add_u32 s%d, s%d, 4" % (S_X1, S_X1),
          "v_lshlrev_b32 v%d, 1, v%d" % (T + 1, T), "v_subrev_u32 v%d, s%d, v%d" % (T + 1, S_X1, T + 1),
          "v_max_i32 v%d, v%d, v%d" % (T + 1, T + 1, T),
          "v_add_u32 v%d, 1, v%d" % (T + 2, T + 1),
          "v_sub_u32 v%d, 64, v%d" % (T + 3, T),
          "v_cmp_gt_i32 vcc, s%d, v%d" % (S_X1, T), "s_and_b32 s%d, s%d, 1" % (S_DOFF, S_W), "s_nop 0",
          "v_cndmask_b32 v%d, v%d, v%d, vcc" % (T + 2, T + 2, T + 3),
          "s_cmp_eq_u32 s%d, 1" % S_DOFF,
          "s_cselect_b64 vcc, -1, 0",
          "s_sub_u32 s%d, s%d, 3" % (S_X1, S_X1),
          "v_cndmask_b32 v%d, v%d, v%d, vcc" % (T + 1, T + 1, T + 2),
          "s_cmp_eq_u32 s%d, 1" % S_DOFF,
          "s_cselect_b32 s%d, s%d, 0" % (S_X1, S_X1),
          "s_sub_u32 s%d, 32, s%d" % (S_DOFF, S_DOFF),
          "s_lshl_b32 s%d, s%d, 13" % (S_X0, S_X0),
          "s_lshl_b32 s%d, s%d, 20" % (S_EVT, S_H),
          "s_add_u32 s%d, s%d, s%d" % (S_X0, S_X0, S_EVT),
          "v_lshlrev_b32 v%d, 14, v%d" % (T + 1, T + 1),
          "v_add_u32 v%d, s%d, v%d" % (T + 1, S_X0, T + 1),
          "v_mov_b32 v%d, 0x40000000" % (T + 2),
          "v_cmp_gt_i32 vcc, s%d, v%d" % (S_X1, T), "s_nop 1",
          "v_cndmask_b32 v%d, v%d, v%d, vcc" % (T + 1, T + 1, T + 2),
          "v_cmp_lt_i32 vcc, s%d, v%d" % (S_DOFF, T), "s_nop 1",
          "v_cndmask_b32 v%d, v%d, v%d, vcc" % (V_TAB, T + 1, T + 2)]
    o += ["s_lshl_b32 s%d, s%d, 2" % (S_X0, S_H), "s_and_b32 s%d, s%d, 3" % (S_X1, S_H), "s_add_u32 s%d, s%d, s%d" % (S_X0, S_X0, S_X1),
          "s_lshl_b32 s%d, s%d, 15" % (S_X0, S_X0), "s_add_u32 s%d, s%d, s%d" % (S_X0, S_X0, S_W8K), "s_add_u32 s%d, s%d, 0x%x" % (S_WOWN, S_X0, WOF_OFF)]
    for hx in range(1, 4):
        o += ["s_xor_b32 s%d, s%d, 0x%x" % (S_X0, S_WOWN, hx << 15), "v_writelane_b32 v%d, s%d, %d" % (V_TAB, S_X0, 33 + hx)]
    return o

def rowmax(Sb, g):
    o = []
    T = V_T
    for qt in range(2):
        s = Sb + qt * 8; t = T + 2 * qt
        o.append("v_max3_f32 v%d, v%d, v%d, v%d" % (t, s, s + 1, V_M + g * 2 + qt))
        o.append("v_max3_f32 v%d, v%d, v%d, v%d" % (t + 1, s + 2, s + 3, s + 4))
        o.append("v_max3_f32 v%d, v%d, v%d, v%d" % (t, t, s + 5, s + 6))
        o.append("v_max3_f32 v%d, v%d, v%d, v%d" % (t, t, t + 1, s + 7))
    for sw in ("v_permlane32_swap_b32", "v_permlane16_swap_b32"):
        for qt in range(2): o.append("v_mov_b32 v%d, v%d" % (T + 2 * qt + 1, T + 2 * qt))
        o.append("s_nop 1")
        for qt in range(2): o.append("%s v%d, v%d" % (sw, T + 2 * qt, T + 2 * qt + 1))
        o.append("s_nop 0")
        for qt in range(2): o.append("v_max_f32 v%d, v%d, v%d" % (T + 2 * qt, T + 2 * qt, T + 2 * qt + 1))
    for qt in range(2):
        for i in range(8): o.append("v_sub_f32 v%d, v%d, v%d" % (Sb + qt * 8 + i, Sb + qt * 8 + i, T + 2 * qt))
        for r in range(4): o.append("v_sub_f32 v%d, 0, v%d" % (CIN + g * 8 + qt * 4 + r, T + 2 * qt))
    return o

def dma_seq():
    return [TTI, RDL] + SLA + [M0A, VDM] + [dmai(n) for n in range(4)] + [M0B, "s_nop 0"] + [dmai(n) for n in range(4, 8)]

def wown_dma():
    o = ["s_add_u32 m0, s%d, 0x20000" % S_W8K]
    for n in range(8):
        if n == 4: o.append(M0B)
        o.append("buffer_load_dwordx4 v%d, %s, s%d offen offset:%d sc1 lds" % (V_L4K if n >= 4 else V_L16, sr(SRD_WS, 4), S_WOWN, 1024 * (n & 3)))
    return o

def prefetch(A):
    A("s_mov_b32 s%d, -1" % S_TT)
    A("s_mov_b32 s%d, 0x8000" % S_SLOT)
    A("s_mov_b64 %s, 0" % sr(S_BAD, 2))
    A("s_mov_b32 s%d, 0" % S_SDONE)
    for i in range(3): A(dma_seq())

def attention(k, last, w0_q=None):
    A = k.A; N = k.name
    A.label("att_w0")
    A(["s_waitcnt vmcnt(16) lgkmcnt(0)", "s_barrier", VRD])
    A(rd(KF, 0, "k"))
    qd = Q(wown_dma() + [x for x in dma_seq() if x != "s_nop 0"] + [TTI, RDL], cap=2)
    qz = Q(zero_o(1))
    step(A, qk("S", S0, zero=True), [qd, qz], pre={0: [("WAITLG", ("k", 0))], 8: [("WAITLG", ("k", 1))]}, vmgap=2)
    step(A, qk("L", S1, zero=True), [qd, qz], drain=[qd, qz], vmgap=2)
    A("s_cmp_lg_u32 s%d, 0" % S_GS)
    A("s_cbranch_scc1 w0_nomask")
    A(mask(S0))
    A.label("w0_nomask")
    A(rowmax(S0, 0))
    A(rowmax(S1, 1))
    m = sm1(S0, P0)
    for g in sorted(m)[:-1]:
        if m[g][0].startswith("v_cvt"): A("s_nop 0")
        A(m[g])
    A("s_waitcnt vmcnt(24) lgkmcnt(0)")
    A("s_add_u32 s%d, s%d, 3" % (S_EVT, S_GS))
    A("s_cmp_lt_u32 s%d, 2" % S_GS)
    A("s_cbranch_scc1 dd_done")
    A.raw(".p2align 3")
    A.label("dd_loop")
    window(A, "D", "D", tail=["s_cmp_lg_u32 s%d, s%d" % (S_TT, S_EVT)], br="s_cbranch_scc1 dd_loop")
    A.label("dd_done")
    A("s_cmp_eq_u32 s%d, 0" % S_GS)
    A("s_cbranch_scc1 ds_win")
    window(A, "D", "D", mask_even=True, tail=["s_cmp_eq_u32 s%d, 35" % S_TT], br="s_cbranch_scc1 fin_d")
    A.label("ds_win")
    window(A, "D", "S", tail=["s_lshl_b32 s%d, s%d, 2" % (S_EVT, S_J), "s_add_u32 s%d, s%d, 8" % (S_EVT, S_EVT),
                              "s_min_u32 s%d, s%d, 35" % (S_EVT, S_EVT), "s_cmp_eq_u32 s%d, 3" % S_W], br="s_cbranch_scc1 ss_chk")
    A("s_nop 6")
    A(mask(S1))
    A.label("ss_chk")
    A("s_cmp_lg_u32 s%d, s%d" % (S_TT, S_EVT))
    A("s_cbranch_scc1 ss_loop")
    A("s_cmp_eq_u32 s%d, 35" % S_EVT)
    A("s_cbranch_scc1 fin_s")
    A("s_cmp_lg_u32 s%d, 0" % S_SDONE)
    A("s_cbranch_scc1 s_flag")
    epilogue(A, "S")
    A("s_mov_b32 s%d, 1" % S_SDONE)
    A("s_add_u32 s%d, s%d, 2" % (S_EVT, S_EVT))
    A("s_branch ss_loop")
    A.label("s_flag")
    A("s_mov_b32 s%d, 35" % S_EVT)
    A("s_cmp_lg_u64 %s, 0" % sr(S_BAD, 2))
    A("s_cbranch_scc1 ss_loop")
    A(flag_st(1))
    A("s_mov_b32 s%d, 0x%x" % (S_CTXS, DBG_OFF))
    A.raw(".p2align 3")
    A.label("ss_loop")
    window(A, "S", "S", tail=["s_cmp_lg_u32 s%d, s%d" % (S_TT, S_EVT)], br="s_cbranch_scc1 ss_loop")
    A("s_branch ss_chk")
    A.label("fin_d")
    r1 = fin(A, k, "D", last)
    vm1, lg1 = list(A.vm), list(A.lg)
    A("s_branch att_epi")
    A.label("fin_s")
    r2 = fin(A, k, "S", last)
    assert r1 == r2 and vm1 == A.vm and lg1 == A.lg
    A.label("att_epi")
    k.stamp("a_end")
    A("s_cmp_lg_u32 s%d, 0" % S_SDONE)
    A("s_cbranch_scc1 att_epi_l")
    epilogue(A, "S")
    A.vm = vm1
    A.label("att_epi_l")
    return r1

def flag_st(val):
    return ["v_mov_b32 v%d, %d" % (V_T + 1, val), "s_mov_b64 exec, 1",
            "buffer_store_dword v%d, off, %s, s%d sc1" % (V_T + 1, sr(SRD_WS, 4), S_FA), "s_mov_b64 exec, -1"]

def redo(k):
    A = k.A
    A.label("att_redo")
    A("s_waitcnt vmcnt(0) lgkmcnt(0)")
    A("s_barrier")
    A("s_mov_b32 s%d, 1" % S_REDO)
    for g, sg in ((0, S_GS), (1, S_GL)):
        A("s_mov_b32 s%d, 0" % S_TT)
        A("s_lshl_b32 s%d, s%d, 20" % (S_X0, S_H))
        A.label("redo_loop%d" % g)
        A("s_add_u32 s%d, s%d, 0x1000" % (S_X1, S_X0))
        for f in range(8):
            A("buffer_load_dwordx4 %s, v%d, %s, s%d offen offset:%d sc1" % (ar(KF + 4 * f, 4), V_L16, sr(SRD_WS, 4), S_X1 if f >= 4 else S_X0, 1024 * (f & 3)))
        A("s_waitcnt vmcnt(0)")
        A(qk("SL"[g], S0, zero=True))
        A("s_nop 7")
        A("s_cmp_lg_u32 s%d, s%d" % (S_TT, sg))
        A("s_cbranch_scc1 redo_nm%d" % g)
        A(mask(S0))
        A.label("redo_nm%d" % g)
        for qt in range(2):
            m = V_M + g * 2 + qt
            for i in range(4):
                A("v_max3_f32 v%d, v%d, v%d, v%d" % (m, m, S0 + qt * 8 + 2 * i, S0 + qt * 8 + 2 * i + 1))
        A("s_add_u32 s%d, s%d, 0x4000" % (S_X0, S_X0))
        A("s_add_u32 s%d, s%d, 1" % (S_TT, S_TT))
        A("s_cmp_le_u32 s%d, s%d" % (S_TT, sg))
        A("s_cbranch_scc1 redo_loop%d" % g)
    prefetch(A)
    A(zero_a() + zero_o(0) + zero_p())
    A("s_branch att_w0")
```

```python
import sys, math, struct
KV_OFF = 0
CTX_OFF = 32 << 20
MISC_OFF = 52 << 20
KVF_OFF = MISC_OFF
CTXF_OFF = MISC_OFF + 4096
RKEY_OFF = MISC_OFF + 8192
GATE_OFF = MISC_OFF + 16384
YB_OFF = MISC_OFF + 24576
HB_OFF = MISC_OFF + 40960
ZERO_Q = 14336
PB_OFF = 64 << 20
OOB = 0x7f000000
WOF_OFF = 48 << 20
SPIN_MAX = 20000
DBG_OFF = 56 << 20
STAMP_OFF = 88 << 20
WS_SIZE = 96 << 20
MF = "v_mfma_f32_16x16x32_bf16"
QSCALE = math.log2(math.e) / math.sqrt(128.0)
def f32hex(x): return "0x%08x" % struct.unpack("<I", struct.pack("<f", x))[0]

S_W, S_H, S_J, S_GS, S_GL = 3, 4, 5, 6, 7
SRD_C, SRD_X, SRD_UK, SRD_UV, SRD_WQ, SRD_WS = 8, 12, 16, 20, 24, 28
S_KROW, S_QROW, S_XM = 32, 34, 36
S_WM, S_WOFF, S_KV = 40, 41, 42
S_SC = 44
S_LIM = 45
S_T0, S_T1, S_T2, S_T3, S_T4, S_T5 = 46, 47, 48, 49, 50, 51
S_TT, S_EVT, S_SLOT, S_W8K = 52, 53, 54, 55
SRD_DBG = 60
PTR = 64
MSK = 64
S_BAD = 72
S_4K, S_REDO, S_SDONE, S_CTXS, S_CTXL, S_DOFF, S_X0, S_X1 = 76, 77, 78, 79, 80, 81, 82, 83
STAMPS = [84, 86, 88, 90, 92, 94, 96, 98, 100, 56, 58, 38]
V_LANE, V_L16, V_OFFX, V_OFFW, V_WADDR, V_XADDR = 1, 2, 4, 8, 12, 16
XB = 65536
WF = 64
ACC = 128
QREG = 0
V_RD, V_DM, V_TAB, V_NEG, V_L16X, V_M = 3, 4, 5, 6, 7, 8
S0, S1, P0, P1, CIN, OREG, V_T = 16, 32, 48, 56, 64, 128, 88
KF, VF, LREG, ONES, ZERO = 64, 96, 128, 144, 148
def qfrag(rt, ds):
    return QREG + ((ds >> 1) * 8 + rt * 2 + (ds & 1)) * 4
def cvt8(t):
    return ["v_cvt_pk_bf16_f32 v%d, v%d, v%d" % (t + i, t + 2 * i, t + 2 * i + 1) for i in range(4)]
S_I0, S_I1 = 37, 43
SRD_WO, SRD_G, SRD_U, SRD_D, SRD_OUT = 8, 80, 72, 64, 16
S_PBW = 32
S_CS, S_CL, S_FA, S_FB, S_PBR, S_XO, S_M4, S_SOK, S_ROW = 19, 22, 26, 27, 33, 34, 35, 36, 40
V_WD2 = 80
V_L4K, V_LW = 12, 13
S_WOWN = 41
FRS, FRL = 128, 160
S_PR, S_PG = 80, 82
S_F0 = 68
L_MW, L_XS, L_SCR = 0x24000, 0x8000, 0x1A000
LOG2E = math.log2(math.e)
```

```python
from asmlib import *
from sched import *
from defs import *

def srdl(d, nbytes):
    return ["s_and_b32 s%d, s%d, 0xffff" % (d + 1, d + 1), "s_mov_b32 s%d, 0x%x" % (d + 2, nbytes), "s_mov_b32 s%d, 0x00020000" % (d + 3)]

DPP = ["row_shr:1 row_mask:0xf bank_mask:0xf bound_ctrl:0", "row_shr:2 row_mask:0xf bank_mask:0xf bound_ctrl:0",
       "row_shr:4 row_mask:0xf bank_mask:0xf bound_ctrl:0", "row_shr:8 row_mask:0xf bank_mask:0xf bound_ctrl:0",
       "row_bcast:15 row_mask:0xa bank_mask:0xf", "row_bcast:31 row_mask:0xc bank_mask:0xf"]

R0 = 32
def router_loads():
    o = ["s_lshl_b32 s%d, s2, 13" % S_T2, "s_lshl_b32 s%d, s%d, 11" % (S_T3, S_W), "s_add_u32 s%d, s%d, s%d" % (S_T2, S_T2, S_T3)]
    o.append(("buffer_load_dwordx4 %s, v%d, %s, s%d offen" % (vr(R0, 4), V_L16, sr(SRD_X, 4), S_T2), "rt"))
    o.append(("buffer_load_dwordx4 %s, v%d, %s, s%d offen offset:1024" % (vr(R0 + 4, 4), V_L16, sr(SRD_X, 4), S_T2), "rt"))
    o.append(("global_load_dwordx4 %s, v%d, %s" % (vr(R0 + 8, 4), V_L16, sr(S_PR, 2)), "rt"))
    o.append(("global_load_dwordx4 %s, v%d, %s" % (vr(R0 + 12, 4), V_L16, sr(S_PG, 2)), "rt"))
    return o
def router_calc():
    o = [("WAITVM", "rt")]
    a = R0 + 16
    for i in range(4):
        for wv in range(2):
            for row in range(2):
                d = a + wv * 2 + row
                o.append("v_dot2_f32_bf16 v%d, v%d, v%d, %s" % (d, R0 + 4 * row + i, R0 + 8 + 4 * wv + i, "v%d" % d if i else "0"))
    for m in DPP:
        for q in range(4): o.append("v_add_f32_dpp v%d, v%d, v%d %s" % (a + q, a + q, a + q, m))
    o += ["s_lshl_b32 s%d, s2, 3" % S_T4, "s_lshl_b32 s%d, s%d, 1" % (S_T5, S_W), "s_add_u32 s%d, s%d, s%d" % (S_T4, S_T4, S_T5),
          "s_sub_u32 s%d, 2047, s%d" % (S_T4, S_T4), "s_sub_u32 s%d, s%d, 1" % (S_T5, S_T4)]
    for row in range(2):
        t = a + 4 + row
        o += ["v_ashrrev_i32 v%d, 31, v%d" % (t, a + row), "v_or_b32 v%d, 0x80000000, v%d" % (t, t), "v_xor_b32 v%d, v%d, v%d" % (a + row, a + row, t),
              "v_and_b32 v%d, 0xfffff800, v%d" % (a + row, a + row), "v_or_b32 v%d, s%d, v%d" % (a + row, S_T4 + row, a + row)]
    for row in range(2): o.append("v_mul_f32 v%d, %s, v%d" % (a + 2 + row, f32hex(-LOG2E), a + 2 + row))
    for row in range(2): o.append("v_exp_f32 v%d, v%d" % (a + 2 + row, a + 2 + row))
    for row in range(2): o.append("v_add_f32 v%d, 1.0, v%d" % (a + 2 + row, a + 2 + row))
    for row in range(2): o.append("v_rcp_f32 v%d, v%d" % (a + 2 + row, a + 2 + row))
    o.append("s_nop 0")
    for row in range(2): o.append("v_or_b32 v%d, 1, v%d" % (a + 2 + row, a + 2 + row))
    return o
def router_store():
    a = R0 + 16
    return ["s_lshl_b32 s%d, s2, 5" % S_T2, "s_lshl_b32 s%d, s%d, 3" % (S_T3, S_W), "s_add_u32 s%d, s%d, s%d" % (S_T2, S_T2, S_T3),
            "s_add_u32 s%d, s%d, 0x%x" % (S_T3, S_T2, GATE_OFF), "s_add_u32 s%d, s%d, 0x%x" % (S_T2, S_T2, RKEY_OFF),
            "s_lshl_b64 exec, 1, 63",
            "buffer_store_dwordx2 %s, off, %s, s%d sc1" % (vr(a, 2), sr(SRD_WS, 4), S_T2),
            "buffer_store_dwordx2 %s, off, %s, s%d sc1" % (vr(a + 2, 2), sr(SRD_WS, 4), S_T3),
            "s_mov_b64 exec, -1"]

def aux_ptrs():
    return ["s_load_dwordx2 %s, s[0:1], 40" % sr(SRD_WO, 2), "s_load_dwordx2 %s, s[0:1], 64" % sr(SRD_G, 2),
            "s_load_dwordx2 %s, s[0:1], 72" % sr(SRD_U, 2), "s_load_dwordx2 %s, s[0:1], 80" % sr(SRD_D, 2)]
V_WD = 24
V_KEY = 96
V_WO = 96
V_MW = 32
S_A0, S_A1, S_A2, S_A3 = 76, 77, 78, 79
def aux_loads():
    o = srdl(SRD_WO, 4 << 20) + srdl(SRD_G, 512 * 1792 * 2) + srdl(SRD_U, 512 * 1792 * 2) + srdl(SRD_D, 512 * 1792 * 2)
    o += ["v_lshrrev_b32 v20, 4, v%d" % V_LANE, "v_lshlrev_b32 v20, 12, v20", "v_and_b32 v21, 15, v%d" % V_LANE, "v_lshl_add_u32 v20, v21, 3, v20",
          "s_lshr_b32 s%d, s%d, 2" % (S_A0, S_H), "s_lshl_b32 s%d, s%d, 4" % (S_A0, S_A0), "s_lshr_b32 s%d, s%d, 1" % (S_A1, S_GS),
          "s_add_u32 s%d, s%d, s%d" % (S_A0, S_A0, S_A1), "s_lshl_b32 s%d, s%d, 15" % (S_A0, S_A0),
          "s_and_b32 s%d, s%d, 3" % (S_A1, S_H), "s_lshl_b32 s%d, s%d, 8" % (S_A1, S_A1), "s_add_u32 s%d, s%d, s%d" % (S_A0, S_A0, S_A1),
          "s_and_b32 s%d, s%d, 1" % (S_A1, S_W), "s_lshl_b32 s%d, s%d, 7" % (S_A1, S_A1), "s_add_u32 s%d, s%d, s%d" % (S_A0, S_A0, S_A1),
          "s_add_u32 s%d, s%d, 0x4000" % (S_A1, S_A0)]
    for i in range(8):
        o.append(("buffer_load_dwordx2 %s, v20, %s, s%d offen offset:%d" % (vr(V_WO + 2 * i, 2), sr(SRD_WO, 4), S_A0 + (i >> 2), 1024 * (i & 3)), "aux"))
    o += ["v_lshlrev_b32 v22, 11, v%d" % V_LANE, "v_mov_b32 v23, 0x%x" % OOB, "v_cmp_gt_u32 %s, 56, v%d" % (sr(S_A2, 2), V_LANE),
          "s_lshr_b32 s%d, s2, 6" % S_F0, "s_lshl_b32 s%d, s%d, 2" % (S_F0, S_F0), "s_add_u32 s%d, s%d, s%d" % (S_F0, S_F0, S_W),
          "s_mul_i32 s%d, s%d, %d" % (S_F0, S_F0, 112 * 1024), "s_and_b32 s%d, s2, 7" % (S_F0 + 1), "s_lshl_b32 s%d, s%d, 7" % (S_F0 + 1, S_F0 + 1),
          "s_add_u32 s%d, s%d, s%d" % (S_F0, S_F0, S_F0 + 1), "s_bfe_u32 s%d, s2, 0x30003" % (S_F0 + 1), "s_lshl_b32 s%d, s%d, 4" % (S_F0 + 1, S_F0 + 1),
          "s_add_u32 s%d, s%d, s%d" % (S_F0, S_F0, S_F0 + 1),
          "v_cndmask_b32 v22, v23, v22, %s" % sr(S_A2, 2)]
    for c in range(2):
        o.append(("buffer_load_dwordx4 %s, v22, %s, s%d offen offset:%d" % (vr(V_WD + 4 * c, 4), sr(SRD_D, 4), S_F0, 1024 * c), "aux"))
    o1 = o; o = []
    o += ["s_lshr_b32 s%d, s2, 6" % S_A2, "s_lshl_b32 s%d, s%d, 3" % (S_A2, S_A2), "s_and_b32 s%d, s2, 7" % S_A3, "s_add_u32 s%d, s%d, s%d" % (S_A2, S_A2, S_A3),
          "s_lshl_b32 s%d, s%d, 3" % (S_A2, S_A2), "s_bfe_u32 s%d, s2, 0x30003" % S_A3, "s_add_u32 s%d, s%d, s%d" % (S_A2, S_A2, S_A3),
          "s_lshl_b32 s%d, s%d, 4" % (S_I1, S_A2),
          "v_mul_u32_u24 v21, 3584, v%d" % V_LANE,
          "s_mul_i32 s%d, s%d, %d" % (S_A2, S_W, 128 * 3584), "s_add_u32 s%d, s%d, s%d" % (S_A2, S_A2, S_I1),
          "s_add_u32 s%d, s%d, %d" % (S_A3, S_A2, 64 * 3584)]
    for mi, sd in enumerate((SRD_G, SRD_U)):
        for n in range(2):
            o.append(("buffer_load_dwordx4 %s, v21, %s, s%d offen" % (vr(V_MW + 8 * mi + 4 * n, 4), sr(sd, 4), S_A2 + n), "aux"))
    return o1, o
def wof_pack():
    o = ["s_mov_b32 s%d, 0x05040100" % S_A0, "s_mov_b32 s%d, 0x07060302" % S_A1,
         "s_lshl_b32 s%d, s%d, 5" % (S_A2, S_H), "s_add_u32 s%d, s%d, s%d" % (S_A2, S_A2, S_GS), "s_lshl_b32 s%d, s%d, 12" % (S_A2, S_A2),
         "s_add_u32 s%d, s%d, 0x%x" % (S_A2, S_A2, WOF_OFF)]
    for e in range(4):
        for d in range(4):
            o.append("v_perm_b32 v%d, v%d, v%d, s%d" % (V_WO + 16 + 4 * e + d, V_WO + 4 * d + 2 + (e >> 1), V_WO + 4 * d + (e >> 1), S_A0 + (e & 1)))
        o.append(("buffer_store_dwordx4 %s, v%d, %s, s%d offen offset:%d sc1" % (vr(V_WO + 16 + 4 * e, 4), V_L16, sr(SRD_WS, 4), S_A2, 1024 * e), "wof"))
    return o
def poison():
    o = ["s_lshr_b32 s%d, s2, 3" % S_PBW, "s_lshl_b32 s%d, s%d, 2" % (S_PBW, S_PBW), "s_add_u32 s%d, s%d, s%d" % (S_PBW, S_PBW, S_W),
         "s_lshl_b32 s%d, s%d, 6" % (S_PBW, S_PBW), "s_and_b32 s%d, s2, 7" % S_A3, "s_add_u32 s%d, s%d, s%d" % (S_PBW, S_PBW, S_A3),
         "s_lshl_b32 s%d, s%d, 11" % (S_PBW, S_PBW), "s_add_u32 s%d, s%d, 0x%x" % (S_PBW, S_PBW, PB_OFF)]
    for i in range(4): o.append("v_mov_b32 v%d, -1" % (48 + i))
    for p in range(8):
        o.append("s_add_u32 s%d, s%d, %d" % (S_A3, S_PBW, p * 16384))
        for q in range(2):
            o.append(("buffer_store_dwordx4 v[48:51], v%d, %s, s%d offen offset:%d sc1" % (V_L16, sr(SRD_WS, 4), S_A3, 1024 * q), "poi"))
    return o
def mw_write():
    o = ["s_lshl_b32 s%d, s%d, 11" % (S_A0, S_W), "s_add_u32 s%d, s%d, 0x%x" % (S_A0, S_A0, L_MW), "v_add_u32 v20, s%d, v%d" % (S_A0, V_L16)]
    for mi in range(2):
        for n in range(2):
            o.append("ds_write_b128 v20, %s offset:%d" % (vr(V_MW + 8 * mi + 4 * n, 4), 8192 * mi + 1024 * n))
    return o

def key_loads(tag="key"):
    o = []
    for hf in range(2):
        o.append("s_mov_b32 s%d, 0x%x" % (S_T4, RKEY_OFF + 4096 * hf))
        for n in range(4):
            o.append(("buffer_load_dwordx4 %s, v%d, %s, s%d offen offset:%d sc1" % (vr(V_KEY + 16 * hf + 4 * n, 4), V_L16, sr(SRD_WS, 4), S_T4, 1024 * n), tag))
    return o
def key_min(t):
    o = ["v_min3_u32 v%d, v%d, v%d, v%d" % (t, V_KEY, V_KEY + 1, V_KEY + 2)]
    for i in range(3, 31, 2): o.append("v_min3_u32 v%d, v%d, v%d, v%d" % (t, t, V_KEY + i, V_KEY + i + 1))
    o.append("v_min_u32 v%d, v%d, v%d" % (t, t, V_KEY + 31))
    return o
def top2(t, s0, s1):
    o = ["v_max_u32 v%d, v%d, v%d" % (t, V_KEY, V_KEY + 1), "v_min_u32 v%d, v%d, v%d" % (t + 1, V_KEY, V_KEY + 1)]
    for i in range(2, 32):
        o.append("v_med3_u32 v%d, v%d, v%d, v%d" % (t + 1, t, t + 1, V_KEY + i))
        o.append("v_max_u32 v%d, v%d, v%d" % (t, t, V_KEY + i))
    o.append("v_mov_b32 v%d, v%d" % (t + 2, t))
    for m in DPP: o += ["s_nop 1", "v_max_u32_dpp v%d, v%d, v%d %s" % (t + 2, t + 2, t + 2, m)]
    o += ["s_nop 0", "v_readlane_b32 s%d, v%d, 63" % (s0, t + 2), "s_nop 1",
          "v_cmp_eq_u32 vcc, s%d, v%d" % (s0, t), "s_nop 1", "v_cndmask_b32 v%d, v%d, v%d, vcc" % (t + 2, t, t + 1)]
    for m in DPP: o += ["s_nop 1", "v_max_u32_dpp v%d, v%d, v%d %s" % (t + 2, t + 2, t + 2, m)]
    o += ["s_nop 0", "v_readlane_b32 s%d, v%d, 63" % (s1, t + 2), "s_nop 0"]
    return o

def xsel_dma(A):
    A("s_lshl_b32 s%d, s%d, 11" % (S_T2, S_W))
    for i in range(2):
        A("s_andn2_b32 s%d, 0x7ff, s%d" % (S_T3, S_T4 + i))
        A("s_lshl_b32 s%d, s%d, 10" % (S_T3, S_T3))
        A("s_add_u32 m0, s%d, %d" % (S_T2, L_XS + 1024 * i))
        A("s_nop 0")
        A(("buffer_load_dwordx4 v%d, %s, s%d offen lds" % (V_L16, sr(SRD_X, 4), S_T3), "xs"))

def mod(A, T, F):
    A("v_lshrrev_b32 v%d, 4, v%d" % (T, V_LANE))
    A("v_bfe_u32 v%d, v%d, 2, 2" % (T + 1, V_LANE))
    A("v_lshl_add_u32 v%d, v%d, 3, v%d" % (T + 1, T, T + 1))
    A("v_lshlrev_b32 v%d, 4, v%d" % (T + 1, T + 1))
    A("v_and_b32 v%d, 1, v%d" % (T + 2, V_LANE))
    A("v_lshl_add_u32 v%d, v%d, 3, v%d" % (T + 1, T + 2, T + 1))
    A("v_bfe_u32 v%d, v%d, 1, 1" % (T + 3, V_LANE))
    A("v_lshl_add_u32 v%d, v%d, 13, v%d" % (T + 1, T + 3, T + 1))
    A("v_add_u32 v%d, 0x%x, v%d" % (T + 1, L_MW, T + 1))
    for ks in range(16):
        for q in range(2):
            A("ds_read_b64_tr_b16 %s, v%d offset:%d" % (vr(F + 4 * ks + 2 * q, 2), T + 1, 512 * ks + 64 * q))
    A("v_lshlrev_b32 v%d, 4, v%d" % (T + 3, T))
    A("v_lshl_add_u32 v%d, v%d, 10, v%d" % (T + 3, T + 2, T + 3))
    A("s_lshl_b32 s%d, s%d, 11" % (S_T2, S_W))
    A("s_add_u32 s%d, s%d, 0x%x" % (S_T2, S_T2, L_XS))
    A("v_add_u32 v%d, s%d, v%d" % (T + 3, S_T2, T + 3))
    A("v_mov_b32 v%d, s%d" % (T + 4, S_T4))
    A("v_mov_b32 v%d, s%d" % (T + 5, S_T5))
    A("v_cmp_eq_u32 vcc, 1, v%d" % (T + 2))
    A("s_andn2_b32 s%d, 0x7ff, s%d" % (S_I0, S_T4))
    A("s_nop 0")
    A("v_cndmask_b32 v%d, v%d, v%d, vcc" % (T + 4, T + 4, T + 5))
    A("v_ashrrev_i32 v%d, 31, v%d" % (T + 5, T + 4))
    A("v_not_b32 v%d, v%d" % (T + 5, T + 5))
    A("v_or_b32 v%d, 0x80000000, v%d" % (T + 5, T + 5))
    A("v_xor_b32 v%d, v%d, v%d" % (T + 4, T + 4, T + 5))
    A("v_mul_f32 v%d, %s, v%d" % (T + 4, f32hex(-LOG2E), T + 4))
    A("v_exp_f32 v%d, v%d" % (T + 4, T + 4))
    A(("WAITVM", "xs"))
    A("v_add_f32 v%d, 1.0, v%d" % (T + 4, T + 4))
    for ks in range(16):
        A("ds_read_b128 %s, v%d offset:%d" % (vr(F + 64 + 4 * ks, 4), T + 3, 64 * ks))
    A("v_rcp_f32 v%d, v%d" % (T + 4, T + 4))
    D = T + 8
    for ks in range(16):
        if ks % 4 == 0: A("s_waitcnt lgkmcnt(%d)" % (12 - ks))
        d = vr(D + 4 * (ks & 1), 4)
        A("%s %s, %s, %s, %s" % (MF, d, vr(F + 4 * ks, 4), vr(F + 64 + 4 * ks, 4), d if ks > 1 else "0"))
    A("s_nop 7")
    for r in range(4): A("v_add_f32 v%d, v%d, v%d" % (D + r, D + r, D + 4 + r))
    for c in range(8): A("v_mov_b32 v%d, v%d" % (V_WD2 + c, V_WD + c))
    for r in range(4): A("v_mov_b32 v%d, v%d" % (D + 4 + r, D + r))
    A("s_nop 1")
    for r in range(4): A("v_permlane32_swap_b32 v%d, v%d" % (D + r, D + 4 + r))
    G = F + 16
    for r in range(4): A("v_mul_f32 v%d, %s, v%d" % (G + r, f32hex(-LOG2E), D + r))
    for r in range(4): A("v_exp_f32 v%d, v%d" % (G + r, G + r))
    for r in range(4): A("v_mul_f32 v%d, v%d, v%d" % (D + r, D + r, D + 4 + r))
    for r in range(4): A("v_add_f32 v%d, 1.0, v%d" % (G + r, G + r))
    for r in range(4): A("v_rcp_f32 v%d, v%d" % (G + r, G + r))
    for r in range(4): A("v_mul_f32 v%d, v%d, v%d" % (D + r, D + r, T + 4))
    for r in range(4): A("v_mul_f32 v%d, v%d, v%d" % (D + r, D + r, G + r))
    for r in range(4): A("v_or_b32 v%d, 1, v%d" % (D + r, D + r))
    A("v_lshlrev_b32 v%d, 4, v%d" % (T, T))
    A("v_lshl_add_u32 v%d, v%d, 5, v%d" % (T, T + 2, T))
    A("s_lshl_b32 s%d, s%d, 2" % (S_T2, S_I1))
    A("s_add_u32 s%d, s%d, 0x%x" % (S_T2, S_T2, HB_OFF))
    A("s_cmp_ge_u32 s%d, %d" % (S_I1, 3584))
    A("s_cselect_b32 s%d, 1, s%d" % (S_T3, S_W))
    A("s_cmp_lg_u32 s%d, 0" % S_T3)
    A("s_cbranch_scc1 mod_nost")
    A(("RAW", ["s_mov_b64 exec, 0x30003", "buffer_store_dwordx4 %s, v%d, %s, s%d offen sc1" % (vr(D, 4), T, sr(SRD_WS, 4), S_T2), "s_mov_b64 exec, -1"]))
    A.label("mod_nost")
    A("s_andn2_b32 s%d, 0x7ff, s%d" % (S_I1, S_T5))

import att
ACC_ = (16, 192)
WRING = (("v", 96), ("v", 112), ("a", 64), ("a", 80))
CFR = {(1, 0): 160, (2, 0): 192, (3, 0): 224, (1, 1): 96, (2, 1): 128, (3, 1): 0}
GROUPS = [(hx, grp, ks, hf) for hx, grp in ((0, 0), (0, 1), (1, 0), (2, 0), (3, 0)) for ks in range(4) for hf in range(2)] + \
         [(hx, 1, ks, hf) for hf in range(2) for hx in (1, 2, 3) for ks in range(4)]
def wreg(n, e):
    t, b = WRING[n & 3]
    return "%s[%d:%d]" % (t, b + 4 * e, b + 4 * e + 3)
def acc(grp, qt, f): return ACC_[grp] + (qt * 8 + f) * 4
def w_rd(n):
    if n >= 64: return []
    hx, grp, ks, hf = GROUPS[n]
    va, off = ((V_LW, 0), (V_L16, 0), (V_L16, 0x8000), (V_L16X, 0))[hx]
    return [("ds_read_b128 %s, v%d offset:%d" % (wreg(n, e), va, off + ks * 8192 + (4 * hf + e) * 1024), ("wr", n)) for e in range(4)]
def g_mf(n):
    hx, grp, ks, hf = GROUPS[n]
    o = []
    for e in range(4):
        for qt in range(2):
            d = vr(acc(grp, qt, 4 * hf + e), 4)
            c = vr((FRS, FRL)[grp] + 8 * ks + 4 * qt, 4) if hx == 0 else ar(CFR[hx, grp] + 8 * ks + 4 * qt, 4)
            o.append("%s %s, %s, %s, %s" % (MF, d, wreg(n, e), c, "0" if hx == 0 and ks == 0 else d))
    return o
def c_loads(grp, sb):
    o = []
    for hx in range(1, 4):
        for ks in range(4):
            for qt in range(2):
                o.append(("buffer_load_dwordx4 %s, v%d, %s, s%d offen offset:%d sc1" % (ar(CFR[hx, grp] + 8 * ks + 4 * qt, 4), V_L16 if ks < 2 else V_L4K,
                          sr(SRD_WS, 4), sb + hx, (ks & 1) * 2048 + qt * 1024), ("c", hx, grp, ks)))
    return o
def fin_last():
    return w_rd(0) + w_rd(1) + c_loads(0, S_T0)
def part_st(p, t):
    grp, qt, hf = p >> 2, (p >> 1) & 1, p & 1
    o = ["s_add_u32 s%d, s%d, %d" % (S_X1, S_PBW, p * 16384)]
    for q in range(2):
        for r in (2 * q, 2 * q + 1):
            for e in (0, 2):
                o.append("v_cvt_pk_bf16_f32 v%d, v%d, v%d" % (t + 2 * r + (e >> 1), acc(grp, qt, 4 * hf + e) + r, acc(grp, qt, 4 * hf + e + 1) + r))
        o.append(("buffer_store_dwordx4 %s, v%d, %s, s%d offen offset:%d sc1" % (vr(t + 4 * q, 4), V_L16, sr(SRD_WS, 4), S_X1, 1024 * q), "ps"))
    return o

def tail_setup():
    o = ["s_and_b32 s%d, s2, 7" % S_X0,
         "s_mul_i32 s%d, s%d, %d" % (S_X1, S_X0, 16384 - 2048), "s_add_u32 s%d, s%d, s%d" % (S_PBR, S_PBW, S_X1),
         "s_cmp_ge_u32 s%d, 4" % S_X0, "s_cselect_b32 s%d, s%d, s%d" % (S_ROW, S_GL, S_GS), "s_lshl_b32 s%d, s%d, 1" % (S_ROW, S_ROW),
         "s_bfe_u32 s%d, s2, 0x10001" % S_X1, "s_add_u32 s%d, s%d, s%d" % (S_ROW, S_ROW, S_X1), "s_lshl_b32 s%d, s%d, 4" % (S_ROW, S_ROW),
         "s_and_b32 s%d, s%d, 3" % (S_X1, S_H), "s_lshl_b32 s%d, s%d, 1" % (S_X1, S_X1), "s_and_b32 s%d, s2, 1" % S_X0,
         "s_add_u32 s%d, s%d, s%d" % (S_X1, S_X1, S_X0), "s_lshl_b32 s%d, s%d, 7" % (S_CB64, S_X1),
         "s_lshl_b32 s%d, s%d, 10" % (S_XO, S_ROW), "s_add_u32 s%d, s%d, s%d" % (S_XO, S_XO, S_CB64)]
    return o + srdl(SRD_OUT, 2 << 20)
S_CB64 = 42
HV, WU, YV = 128, 144, 160
def h_loads():
    return [("buffer_load_dwordx2 %s, v%d, %s, s%d offen offset:%d sc1" % (vr(HV + 2 * i, 2), V_T + 3, sr(SRD_WS, 4), S_T4, 32 * i), "h") for i in range(2)]
def h_min(t):
    return ["v_min3_u32 v%d, v%d, v%d, v%d" % (t, HV, HV + 1, HV + 2), "v_min_u32 v%d, v%d, v%d" % (t, t, HV + 3)]
XV, GV, UV, VA, XU = 128, 136, 16, 137, 140
def f_loads():
    o = [("buffer_load_dwordx4 %s, v%d, %s, s%d offen offset:%d" % (vr(XV + 4 * q, 4), VA, sr(SRD_X, 4), S_XO, 16 * q), "fx") for q in range(2)]
    return o + f_loads2()
def f_loads2():
    o = [("buffer_load_dword v%d, v%d, %s, s%d offen sc1" % (GV, VA + 1, sr(SRD_WS, 4), S_T4), "fx")]
    for rg in range(4):
        o.append("s_add_u32 s%d, s%d, %d" % (S_X0, S_T5, 4096 * rg))
        o += [("buffer_load_dwordx4 %s, v%d, %s, s%d offen offset:%d sc1" % (vr(UV + 16 * rg + 4 * q, 4), VA + 2, sr(SRD_WS, 4), S_X0, 16 * q), "fx") for q in range(4)]
    o.append(att.ld_flags("fx"))
    return o
def f_chk(t):
    o = ["v_min3_u32 v%d, v%d, v%d, v%d" % (t, UV, UV + 1, UV + 2)]
    for i in range(3, 63, 2): o.append("v_min3_u32 v%d, v%d, v%d, v%d" % (t, t, UV + i, UV + i + 1))
    o += ["v_min_u32 v%d, v%d, v%d" % (t, t, UV + 63), "v_cndmask_b32 v%d, 1, v%d, %s" % (t, t, sr(S_T0, 2)),
          "v_min3_u32 v%d, v%d, v%d, v%d" % (t, t, GV, att.V_FL)]
    return o

def p3(k, rest, chk):
    A = k.A
    T = V_T
    spins = []
    qw = Q(cap=2)
    qa = Q(att.epi_list("L"), first=3)
    qv = Q(rest)
    qb = Q()
    def run(n0, n1, post=None, s1=None, extra=None, drain=(), vmgap=1):
        post = post or {}; s1 = s1 or {}
        for n in range(n0, n1):
            hx, grp, ks, hf = GROUPS[n]
            qw.add(w_rd(n + 2))
            pre = [("WAITLG", ("wr", n))]
            if hx and (hf == 0): pre.append(("WAITVM", ("c", hx, grp, ks)))
            o = 8 * (n - n0)
            lf = step(A, g_mf(n), [qw, qa, qv, qb], pre={0: pre}, post={g - o: v for g, v in post.items() if o <= g < o + 8},
                      s1={g - o: v for g, v in s1.items() if o <= g < o + 8}, drain=[qw] + (list(drain) if n == n1 - 1 else []), vmgap=vmgap)
            qa.first = 0
            if lf: print("; group", n, "left", lf, file=sys.stderr)
    run(0, 8, drain=[qa])
    A("s_nop 0")
    step(A, att.epi_chk_mf("L"), [qv])
    k.stamp("t_os")
    ck = att.epi_chk()
    post = {8: ck[:2], 9: [ck[2]], 10: [ck[3], "v_mov_b32 v%d, s%d" % (T + 1, S_X1)],
            15: ["v_mov_b32 v%d, s%d" % (T, S_X0), "v_mov_b32 v%d, 0x%x" % (T + 2, L_SCR)],
            16: [("ds_write_b32 v%d, v%d" % (T + 1, T), "dec")],
            21: [("ds_read_b128 %s, v%d" % (vr(T + 4, 4), T + 2), "dec2")],
            28: ["v_or3_b32 v%d, v%d, v%d, v%d" % (T, T + 4, T + 5, T + 6), "v_or_b32 v%d, v%d, v%d" % (T, T, T + 7)],
            30: ["v_readfirstlane_b32 s%d, v%d" % (S_X0, T)]}
    s1 = {1: ["s_lshl_b32 s%d, s%d, 2" % (S_X1, S_W)], 2: ["s_add_u32 s%d, s%d, 0x%x" % (S_X1, S_X1, L_SCR)],
          12: [att.BADOR], 13: ["s_cmp_lg_u64 %s, 0" % sr(S_BAD, 2)],
          14: ["s_mov_b32 s%d, 1" % S_X0 if k.opts.get("forceredo") else "s_cselect_b32 s%d, 1, 0" % S_X0],
          19: [("WAITVM", "wc")], 20: [("WAITLG", "dec")], 21: ["s_barrier"], 27: [("WAITLG", "dec2")],
          32: ["s_cmp_gt_u32 s%d, s%d" % (S_X0, S_REDO)], 33: ["s_cbranch_scc1 att_redo"]}
    run(8, 13, post=post, s1=s1, drain=[qv])
    qv.add(att.SLA + [att.M0A, att.VDM] + [(att.dmai(n), "wd") for n in range(4)] + [att.M0B] + [(att.dmai(n), "wd") for n in range(4, 8)])
    qv.add(["v_min_u32 v%d, 55, v%d" % (T + 3, V_LANE), "v_and_b32 v%d, 3, v%d" % (T + 2, T + 3), "v_lshrrev_b32 v%d, 2, v%d" % (T + 3, T + 3),
            "v_lshlrev_b32 v%d, 6, v%d" % (T + 3, T + 3), "v_lshl_add_u32 v%d, v%d, 3, v%d" % (T + 3, T + 2, T + 3),
            "s_lshr_b32 s%d, s2, 6" % S_T4, "s_lshl_b32 s%d, s%d, 2" % (S_T4, S_T4), "s_add_u32 s%d, s%d, s%d" % (S_T4, S_T4, S_W),
            "s_mul_i32 s%d, s%d, %d" % (S_T4, S_T4, 112 * 8), "s_add_u32 s%d, s%d, 0x%x" % (S_T4, S_T4, HB_OFF)] + h_loads())
    fl = att.flag_st(2)
    pos = k.opts.get("lflag", 20)
    run(13, 16, post={pos: [fl[0]], pos + 2: [fl[1:]]}, s1={pos + 2: [("WAITVM", "cst")]}, drain=[qv])
    A("s_cmp_lg_u32 s%d, 0" % S_SOK)
    A("s_cbranch_scc1 s_slow")
    A.label("s_slow_ok")
    A.alt = list(A.vm) + [x[1] for x in c_loads(0, S_CS)]
    k.stamp("t_ol")
    for c in range(8):
        qb.add(["v_lshlrev_b32 v%d, 16, v%d" % (WU + 2 * c, V_WD2 + c), "v_and_b32 v%d, 0xffff0000, v%d" % (WU + 2 * c + 1, V_WD2 + c)])
    run(16, 18, drain=[qb])
    lchk = ["v_cmp_gt_u32 vcc, 2, v%d" % att.V_FL, "s_nop 0", "s_and_b32 vcc_lo, vcc_lo, s%d" % S_M4, "s_mov_b32 vcc_hi, 0"]
    pc = k.opts.get("lchk", 8)
    qb.add([("WAITVM", "h")] + h_min(T) + [("RAW", chk("h_spin", T))])
    for i in range(2):
        for tok in range(2):
            for e in range(8):
                qb.add(["%s v%d, v%d, v%d" % ("v_fmac_f32" if i else "v_mul_f32", YV + 8 * tok + e, HV + 2 * tok + i, WU + 8 * i + e)])
    qb.add(["s_lshl_b32 s%d, s%d, 6" % (S_T4, S_W), "s_add_u32 s%d, s%d, 0x%x" % (S_T4, S_T4, L_SCR + 64), "v_lshrrev_b32 v%d, 4, v%d" % (HV, V_LANE),
            "v_lshlrev_b32 v%d, 4, v%d" % (HV, HV), "v_add_u32 v%d, s%d, v%d" % (HV, S_T4, HV)])
    for sw, n in (("v_permlane32_swap_b32", 8), ("v_permlane16_swap_b32", 4)):
        for i in range(n): qb.add(["%s v%d, v%d" % (sw, YV + i, YV + n + i)])
        for i in range(n): qb.add(["v_add_f32 v%d, v%d, v%d" % (YV + i, YV + i, YV + n + i)])
    for m in DPP[:4]:
        for q in range(4): qb.add(["v_add_f32_dpp v%d, v%d, v%d %s" % (YV + q, YV + q, YV + q, m)])
    qb.add(["s_mov_b32 s%d, 0x80008000" % S_T4, "s_mov_b32 s%d, 0x80008000" % S_T5,
            ["s_mov_b64 exec, %s" % sr(S_T4, 2), ("ds_write_b128 v%d, %s" % (HV, vr(YV, 4)), "yw"), "s_mov_b64 exec, -1"]])
    pl = k.opts.get("lpoll", 24)
    run(18, 24, post={pl: [att.ld_flags()]})
    def l_go():
        qv.add(c_loads(1, S_CL))
        return [("RAW", lchk[:3] + ["s_cbranch_scc1 l_spin", "l_spin_ok:"])]
    run(24, 30, s1={pc: [("WAITVM", "fl")], pc + 1: l_go}, drain=[qb])
    A(("WAITVM", "wd", "lgkmcnt(0)"))
    A.lg = []
    A("s_barrier")
    k.stamp("t_b2")
    o = ["v_and_b32 v%d, 3, v%d" % (HV, V_LANE), "v_lshlrev_b32 v%d, 4, v%d" % (HV + 1, HV), "v_add_u32 v%d, 0x%x, v%d" % (HV + 2, L_SCR + 64, HV + 1)]
    o += [("ds_read_b128 %s, v%d offset:%d" % (vr(YV + 4 * i, 4), HV + 2, 64 * i), "yr") for i in range(4)]
    o += ["v_lshrrev_b32 v%d, 1, v%d" % (HV, HV), "v_mul_u32_u24 v%d, %d, v%d" % (HV, 2048 - 32, HV), "v_add_u32 v%d, v%d, v%d" % (HV, HV, HV + 1),
          "s_lshr_b32 s%d, s2, 6" % S_T4, "s_lshl_b32 s%d, s%d, 4" % (S_T4, S_T4), "s_and_b32 s%d, s2, 7" % S_T5, "s_add_u32 s%d, s%d, s%d" % (S_T4, S_T4, S_T5),
          "s_lshl_b32 s%d, s%d, 3" % (S_T4, S_T4), "s_bfe_u32 s%d, s2, 0x30003" % S_T5, "s_add_u32 s%d, s%d, s%d" % (S_T4, S_T4, S_T5),
          "s_lshl_b32 s%d, s%d, 5" % (S_T4, S_T4), "s_add_u32 s%d, s%d, 0x%x" % (S_T4, S_T4, YB_OFF),
          ["s_cmp_lg_u32 s%d, 0" % S_W, "s_cselect_b32 s%d, s%d, s%d" % (S_T4, S_LIM, S_T4)],
          ("WAITLG", "yr")]
    for a_, b_ in ((0, 4), (8, 12), (0, 8)):
        o += ["v_add_f32 v%d, v%d, v%d" % (YV + a_ + i, YV + a_ + i, YV + b_ + i) for i in range(4)]
    o += ["v_or_b32 v%d, 1, v%d" % (YV + i, YV + i) for i in range(4)]
    o.append(["s_mov_b64 exec, 15", ("buffer_store_dwordx4 %s, v%d, %s, s%d offen sc1" % (vr(YV, 4), HV, sr(SRD_WS, 4), S_T4), "ys"), "s_mov_b64 exec, -1"])
    qb.add(o)
    run(30, 40, drain=[qv, qb])
    k.stamp("t_s")
    PT = (160, 168, 176, 184)
    qa.first = 8
    for p in range(4): qa.add(part_st(p, PT[p]))
    o = ["v_and_b32 v%d, 15, v%d" % (VA + 1, V_LANE), "v_lshrrev_b32 v%d, 4, v%d" % (VA + 2, V_LANE), "v_lshlrev_b32 v%d, 10, v%d" % (VA, VA + 1),
         "v_lshl_add_u32 v%d, v%d, 5, v%d" % (VA, VA + 2, VA), "v_lshlrev_b32 v%d, 6, v%d" % (VA + 2, VA + 2), "v_add_u32 v%d, s%d, v%d" % (VA + 1, S_ROW, VA + 1),
         "v_cmp_eq_u32 %s, s%d, v%d" % (sr(S_T0, 2), S_I0, VA + 1), "v_cmp_eq_u32 %s, s%d, v%d" % (sr(S_T2, 2), S_I1, VA + 1),
         "v_add_u32 v%d, 0x800, v%d" % (T, VA + 2), "v_mov_b32 v%d, 0x%x" % (T + 1, OOB), "v_lshlrev_b32 v%d, 2, v%d" % (VA + 1, VA + 1),
         "v_cndmask_b32 v%d, v%d, v%d, %s" % (VA + 2, T + 1, VA + 2, sr(S_T0, 2)), "v_cndmask_b32 v%d, v%d, v%d, %s" % (VA + 2, VA + 2, T, sr(S_T2, 2)),
         "s_or_b64 %s, %s, %s" % (sr(S_T0, 2), sr(S_T0, 2), sr(S_T2, 2)), "s_mov_b32 s%d, 0x%x" % (S_T4, GATE_OFF),
         "s_lshl_b32 s%d, s%d, 1" % (S_T5, S_CB64), "s_add_u32 s%d, s%d, 0x%x" % (S_T5, S_T5, YB_OFF)]
    qb.add(o)
    qa.add(f_loads())
    run(40, 41)
    run(41, 44, drain=[qb])
    run(44, 52, drain=[qa])
    qa.first = 8
    for p in (4, 6): qa.add(part_st(p, PT[p - 4]))
    B = UV
    o = [("WAITVM", "fx")] + f_chk(T) + [("RAW", chk("f_spin", T))]
    for i in range(8):
        o += ["v_lshlrev_b32 v%d, 16, v%d" % (XU + 2 * i, XV + i), "v_and_b32 v%d, 0xffff0000, v%d" % (XU + 2 * i + 1, XV + i)]
    for a_, b_ in ((UV, UV + 16), (UV + 32, UV + 48), (UV, UV + 32), (UV, XU)):
        o += ["v_add_f32 v%d, v%d, v%d" % (a_ + i, a_ + i, b_ + i) for i in range(16)]
    qa.add(o)
    run(52, 53)
    run(53, 64, drain=[qa])
    k.stamp("t_mm")
    A("s_nop 5")
    for p in (5, 7): A(part_st(p, PT[p - 4]))
    A("s_add_u32 s%d, s%d, 0x2000" % (S_T2, S_PBR))
    A("s_mov_b32 s%d, 0" % S_T3)
    if k.opts.get("fsleep"): A("s_sleep %d" % k.opts["fsleep"])
    R, U, S = 192, 48, 32
    A.label("g_loop")
    for src in range(8):
        for q in range(2):
            A("buffer_load_dwordx4 %s, v%d, %s, s%d offen offset:%d sc1" % (vr(R + 8 * src + 4 * q, 4), V_L4K if src & 2 else V_L16, sr(SRD_WS, 4),
              S_T2 if src & 4 else S_PBR, (src & 1) * 2048 + q * 1024))
    for src in range(8):
        A("s_waitcnt vmcnt(%d)" % (14 - 2 * src))
        d = S if src == 0 else U
        for i in range(8):
            A("v_lshlrev_b32 v%d, 16, v%d" % (d + 2 * i, R + 8 * src + i))
            A("v_and_b32 v%d, 0xffff0000, v%d" % (d + 2 * i + 1, R + 8 * src + i))
        if src:
            for i in range(8): A("v_pk_add_f32 %s, %s, %s" % (vr(S + 2 * i, 2), vr(S + 2 * i, 2), vr(U + 2 * i, 2)))
    for i in range(4): A("v_pk_add_f32 %s, %s, %s" % (vr(U + 2 * i, 2), vr(S + 2 * i, 2), vr(S + 8 + 2 * i, 2)))
    for i in range(8): A("v_pk_add_f32 %s, %s, %s neg_lo:[0,1] neg_hi:[0,1]" % (vr(S + 2 * i, 2), vr(S + 2 * i, 2), vr(B + 2 * i, 2)))
    for i in range(2): A("v_pk_add_f32 %s, %s, %s" % (vr(U + 2 * i, 2), vr(U + 2 * i, 2), vr(U + 4 + 2 * i, 2)))
    A("v_pk_add_f32 %s, %s, %s" % (vr(U, 2), vr(U, 2), vr(U + 2, 2)))
    A("s_add_u32 s%d, s%d, 1" % (S_T3, S_T3))
    A("v_cmp_u_f32 vcc, v%d, v%d" % (U, U + 1))
    for i in range(8): A("v_pk_fma_f32 %s, %s, %s, %s op_sel:[0,0,0] op_sel_hi:[1,0,1]" % (vr(S + 2 * i, 2), vr(S + 2 * i, 2), vr(GV, 2), vr(B + 2 * i, 2)))
    A("s_cmp_gt_u32 s%d, %d" % (S_T3, SPIN_MAX // 4))
    A("s_cbranch_scc1 g_done")
    A("s_cmp_lg_u64 vcc, 0")
    A("s_cbranch_scc1 g_loop")
    A.label("g_done")
    for i in range(8): A("v_cvt_pk_bf16_f32 v%d, v%d, v%d" % (S + i, S + 2 * i, S + 2 * i + 1))
    for q in range(2):
        A("buffer_store_dwordx4 %s, v%d, %s, s%d offen offset:%d" % (vr(S + 4 * q, 4), VA, sr(SRD_OUT, 4), S_XO, 16 * q))
    A.alt = None
    schk = ["v_cmp_eq_u32 vcc, 0, v%d" % att.V_FL] + lchk[1:]
    return [("s_slow", att.ld_flags(), schk, c_loads(0, S_CS)), ("l_spin", att.ld_flags(), lchk, None),
            ("h_spin", h_loads(), h_min(T) + ["v_cmp_eq_u32 vcc, 0, v%d" % T], None),
            ("f_spin", f_loads2(), f_chk(T) + ["v_cmp_eq_u32 vcc, 0, v%d" % T], None)]
```

```python
import sys
from asmlib import *
from sched import *
from defs import *
import mk2, att
import tail2 as tail
from mk2 import K, prologue, frontend, dump_stamps

class NoTrack:
    def __init__(self, A): self.A = A
    def __enter__(self):
        A = self.A; self.sv = (list(A.vm), A.out, list(A.lg))
    def __exit__(self, *a):
        A = self.A; A.vm, A.out, A.lg = self.sv

def init_zero(A):
    with NoTrack(A):
        A("s_lshl_b32 s%d, s%d, 2" % (S_T2, S_W))
        A("s_or_b32 s%d, s2, s%d" % (S_T2, S_T2))
        A("s_cmp_gt_u32 s%d, 3" % S_T2)
        A("s_cbranch_scc1 init_skip")
        for i in range(4): A("v_mov_b32 v%d, 0" % (96 + i))
        A("s_mul_i32 s%d, s2, %d" % (S_T2, ZERO_Q))
        A("s_add_u32 s%d, s%d, 0x%x" % (S_T2, S_T2, MISC_OFF))
        for n in range(ZERO_Q // 1024):
            if n and n % 4 == 0: A("s_add_u32 s%d, s%d, 0x1000" % (S_T2, S_T2))
            A("buffer_store_dwordx4 v[96:99], v%d, %s, s%d offen offset:%d sc1" % (V_L16, sr(SRD_WS, 4), S_T2, 1024 * (n & 3)))
        A("v_mov_b32 v100, 1")
        A("s_lshl_b32 s%d, s2, 2" % S_T2)
        A("s_waitcnt vmcnt(0)")
        A("s_mov_b64 exec, 1")
        A("buffer_store_dword v100, off, %s, s%d sc1" % (sr(SRD_DBG, 4), S_T2))
        A("s_mov_b64 exec, -1")
        A.label("init_skip")

def spin(A, name, load, vreg, back, after=None):
    with NoTrack(A):
        A.label(name)
        A("s_mov_b32 s%d, 0" % S_T3)
        A.label(name + "_l")
        A("s_sleep 2")
        A(load)
        A("s_add_u32 s%d, s%d, 1" % (S_T3, S_T3))
        A("s_waitcnt vmcnt(0)")
        A(vreg if isinstance(vreg, list) else "v_cmp_eq_u32 vcc, 0, v%d" % vreg)
        A("s_cmp_gt_u32 s%d, %d" % (S_T3, SPIN_MAX))
        A("s_cbranch_scc1 %s_x" % name)
        A("s_cmp_lg_u64 vcc, 0")
        A("s_cbranch_scc1 %s_l" % name)
        A.label(name + "_x")
        if after: A(after)
        A("s_branch %s" % back)

def chk(name, vreg):
    return ["v_cmp_eq_u32 vcc, 0, v%d" % vreg, "s_nop 0", "s_cmp_lg_u64 vcc, 0", "s_cbranch_scc1 %s" % name, name + "_ok:"]

V_INIT = 18
LD_INIT = "buffer_load_dword v%d, v19, %s, 0 offen sc1" % (V_INIT, sr(SRD_DBG, 4))

def flag_store(sa, w0only=None, v=19):
    o = []
    if w0only: o += ["s_cmp_lg_u32 s%d, 0" % S_W, "s_cbranch_scc1 %s" % w0only]
    o += ["v_mov_b32 v%d, 1" % v, "s_mov_b64 exec, 1",
          "buffer_store_dword v%d, off, %s, s%d sc1" % (v, sr(SRD_WS, 4), sa), "s_mov_b64 exec, -1"]
    if w0only: o.append(w0only + ":")
    return ("RAW", o)

S_KVF = 70
def kernel(A, name, opts):
    k = K(A, name, opts)
    kernel_header(A, name)
    k.stamp("start")
    prologue(k)
    def pro(A):
        A(tail.router_loads())
        init_zero(A)
    hooks = {"pro": pro}
    qx = Q(tail.router_calc(), cap=2)
    for kap in range(4, 16): hooks[kap] = lambda k: [qx]
    hooks[("qm", 19)] = ["v_and_b32 v19, 3, v%d" % V_LANE, "v_lshlrev_b32 v19, 2, v19"]
    hooks[("pre", 20)] = [(LD_INIT, "init")]
    hooks[("tag", 28)] = ["init"]
    hooks[("pre", 28)] = chk("init_spin", V_INIT) + tail.router_store()
    hooks[("pre", 16)] = tail.aux_ptrs()
    a1, a2 = tail.aux_loads()
    qa = Q(a1, cap=2, period=opts.get("auxp", 10))
    def more(k):
        qa.add(a2 + ["s_lshl_b32 s%d, s%d, 7" % (S_KVF, S_H), "s_lshl_b32 s%d, s%d, 2" % (S_KVF + 1, S_J),
                     "s_add_u32 s%d, s%d, s%d" % (S_KVF, S_KVF, S_KVF + 1), "s_add_u32 s%d, s%d, 0x%x" % (S_KVF, S_KVF, KVF_OFF)])
        return [qa]
    for kap in range(18, 60): hooks[kap] = lambda k: [qa]
    hooks[30] = more
    qp = Q(tail.wof_pack() + tail.poison(), cap=2, period=opts.get("poip", 8))
    def chk_a(k):
        assert not qa.items, qa.items
        return [qp]
    hooks[("tag", 68)] = ["aux"]
    for kap in range(68, 84): hooks[kap] = chk_a
    hooks[("tag", 83)] = [("st", 3), "wof"]
    hooks[("pre", 83)] = [flag_store(S_KVF, "kvf_skip")]
    hooks[("qm", 84)] = tail.key_loads()
    hooks[("qm", 88)] = tail.mw_write()
    hooks[("pre", 92)] = ["s_load_dwordx2 %s, s[0:1], 96" % sr(SRD_OUT, 2)]
    frontend(k, hooks)
    assert not qx.items and not qp.items
    k.stamp("fe")
    ld_kv = "buffer_load_dword v21, v20, %s, s%d offen sc1" % (sr(SRD_WS, 4), S_KV)
    A("v_and_b32 v20, 7, v%d" % V_LANE)
    A("v_lshlrev_b32 v20, 2, v20")
    A("s_lshl_b32 s%d, s%d, 7" % (S_KV, S_H))
    A("s_add_u32 s%d, s%d, 0x%x" % (S_KV, S_KV, KVF_OFF))
    A((ld_kv, "kvf"))
    A(("WAITVM", "key"))
    A(tail.key_min(35))
    A(chk("key_spin", 35))
    A(tail.top2(32, S_T4, S_T5))
    tail.xsel_dma(A)
    A(att.setup())
    A(att.zero_a())
    A(("WAITVM", "kvf"))
    A(chk("kv_spin", 21))
    k.stamp("kvf")
    att.prefetch(A)
    k.stamp("a_pf")
    A(tail.tail_setup())
    tail.mod(A, 32, 128)
    A(att.zero_o(0) + att.zero_p())
    k.stamp("aux")
    rest = att.attention(k, tail.fin_last())
    sp = tail.p3(k, rest, chk)
    if opts.get("stamps") or opts.get("cyc"):
        A("s_waitcnt vmcnt(0)")
        k.stamp("end")
        dump_stamps(k)
    A.label("%s_end" % name)
    A("s_endpgm")
    att.redo(k)
    spin(A, "init_spin", LD_INIT, V_INIT, "init_spin_ok")
    spin(A, "kv_spin", ld_kv, 21, "kv_spin_ok")
    spin(A, "key_spin", tail.key_loads(), tail.key_min(35) + ["v_cmp_eq_u32 vcc, 0, v35"], "key_spin_ok")
    for nm, ld, c, af in sp: spin(A, nm, ld, c, nm + "_ok", af)
    return k

def build(out, opts):
    A = Asm()
    A.raw('.amdgcn_target "amdgcn-amd-amdhsa--gfx950"')
    A.raw(".text")
    name = "gated_mix__compressed_kv_cla__moe_arch_mod__prompt_kernel"
    k = kernel(A, name, opts)
    errs, n = check(A)
    for e in errs: print(e, file=sys.stderr)
    print("instructions:", n, "hazards:", len(errs), "maxout:", A.maxout, file=sys.stderr)
    l = "; @launch kernel=%s grid=(256,1,1) block=(256,1,1) lds=163840\n; stamps: %s" % (name, " ".join(k.stn))
    open(out, "w").write(mk2.HEAD + l + "\n" + A.text() + '.section .rodata,"a"\n' + kernel_desc(name, 512, 256))
if __name__ == "__main__":
    opts = {k.split('=')[0]: (int(k.split('=')[1]) if '=' in k else True) for k in sys.argv[2:]}
    build(sys.argv[1], opts)
```

```python
from asmlib import *
from sched import *
from defs import *

def qk(grp, Sb, zero=False):
    g = 0 if grp == "S" else 1
    out = []
    for ds in range(4):
        for qt in range(2):
            for kt in range(2):
                d = vr(Sb + (qt * 2 + kt) * 4, 4)
                c = d if ds else ("0" if zero else vr(CIN + g * 8 + qt * 4, 4))
                out.append("%s %s, %s, %s, %s" % (MF, d, ar(KF + (ds * 2 + kt) * 4, 4), ar(qfrag(g * 2 + qt, ds), 4), c))
    return out

def pv(grp, Pb, vf=VF):
    g = 0 if grp == "S" else 1
    out = []
    for dt in range(8):
        for qt in range(2):
            d = vr(OREG + g * 64 + (qt * 8 + dt) * 4, 4)
            out.append("%s %s, %s, %s, %s" % (MF, d, ar(vf + dt * 4, 4), vr(Pb + qt * 4, 4), d))
    for qt in range(2):
        d = ar(LREG + g * 8 + qt * 4, 4)
        out.append("%s %s, %s, %s, %s" % (MF, d, ar(ONES, 4), vr(Pb + qt * 4, 4), d))
    return out

def sm(Sb, Pb):
    m = {}
    for i in range(16): m.setdefault(2 * i, []).append("v_exp_f32 v%d, v%d" % (Sb + i, Sb + i))
    for k in range(8): m.setdefault(4 * k + 3, []).append("v_cvt_pk_bf16_f32 v%d, v%d, v%d" % (Pb + k, Sb + 2 * k, Sb + 2 * k + 1))
    return m
def sm1(Sb, Pb): return {g: v for g, v in sm(Sb, Pb).items() if g < 16}
def sm2(Sb, Pb): return {g - 16: v for g, v in sm(Sb, Pb).items() if g >= 16}

def rd(dst, off, tag, va=V_RD, grp=4):
    return [("ds_read_b128 %s, v%d offset:%d" % (ar(dst + 4 * f, 4), va, off + 1024 * f), (tag, f // grp)) for f in range(8)]

def mask(Sb):
    out = []
    for r in range(4): out.append("v_cndmask_b32 v%d, v%d, v%d, %s" % (Sb + r, Sb + r, V_NEG, sr(MSK + 2 * r, 2)))
    for r in range(4): out.append("v_mov_b32 v%d, v%d" % (Sb + 4 + r, V_NEG))
    for r in range(4): out.append("v_cndmask_b32 v%d, v%d, v%d, %s" % (Sb + 12 + r, Sb + 12 + r, V_NEG, sr(MSK + 2 * r, 2)))
    return out

RDL = "v_readlane_b32 s%d, v%d, s%d" % (S_DOFF, V_TAB, S_TT)
M0A = "s_add_u32 m0, s%d, s%d" % (S_SLOT, S_W8K)
M0B = "s_add_u32 m0, m0, 0x1000"
TTI = "s_add_u32 s%d, s%d, 1" % (S_TT, S_TT)
VDM = "v_add_u32 v%d, s%d, v%d" % (V_DM, S_DOFF, V_L16)
VRD = "v_xor_b32 v%d, s%d, v%d" % (V_RD, S_SLOT, V_L16X)
SLA = ["s_add_u32 s%d, s%d, 0x8000" % (S_SLOT, S_SLOT), "s_and_b32 s%d, s%d, 0x1ffff" % (S_SLOT, S_SLOT)]
def dmai(n):
    return "buffer_load_dwordx4 v%d, %s, %s offen offset:%d sc1 lds" % (V_DM, sr(SRD_WS, 4), "s%d" % S_4K if n >= 4 else "0", 1024 * (n & 3))
CARRY = "v_cvt_pk_bf16_f32 v%d, v%d, v%d" % (P0 + 3, S0 + 6, S0 + 7)
WAITW = "s_waitcnt vmcnt(19) lgkmcnt(0)"
POI = "buffer_store_dwordx2 %s, v%d, %s, s%d offen sc1" % (vr(V_PZ, 2), V_L8, sr(SRD_WS, 4), S_POI)
POIA = "s_add_u32 s%d, s%d, 512" % (S_POI, S_POI)

def smpost():
    post = {}
    for base, m in ((0, sm2(S0, P0)), (18, sm1(S1, P1)), (34, sm2(S1, P1)), (52, sm1(S0, P0))):
        for g, v in m.items(): post[base + g] = list(v)
    assert post[67] == [CARRY]
    del post[67]
    return post

def window(A, prev, cur, mask_even=False, tail=None, br=None):
    gp = "S" if prev == "D" else "L"
    gc = "S" if cur == "D" else "L"
    mf = pv("L", P1) + qk(gc, S0) + pv(gp, P0) + qk("L", S1)
    post = smpost()
    def put(g, x): post.setdefault(g, []).append(x)
    put(1, CARRY); put(1, VRD)
    K1 = rd(KF, 0, "k1", grp=2); V1 = rd(VF, 16384, "v1", grp=2); K2 = rd(KF, 8192, "k2", grp=2); V2 = rd(VF, 24576, "v2", grp=2)
    for g, x in zip((3, 5, 5, 11, 13, 13, 15, 16), K1): put(g, x)
    for g, x in zip((16, 19, 19, 21, 25, 27, 27, 29), V1): put(g, x)
    if cur == "S":
        for g, x in zip((33, 35, 35, 37, 41, 43, 43, 45), K2): put(g, x)
    if prev == "S":
        for g, x in zip((49, 50, 50, 51, 51, 55, 57, 57), V2): put(g, x)
    put(7, VDM)
    post[63] = post.pop(59) + post[63]
    for n, g in enumerate((9, 17, 23, 31, 39, 47, 53, 59)): put(g, dmai(n))
    put(61, POI)
    put(65, RDL)
    s1 = {0: ["s_barrier"], 2: [SLA[0]], 3: [SLA[1]], 4: [M0A], 5: [POIA], 34: [M0B], 62: [TTI], 66: [WAITW]}
    for i, x in enumerate(tail or []): s1[65 - len(tail) + i + (1 if 65 - len(tail) + i >= 62 else 0)] = [x]
    if br: s1[67] = [br]
    pre = {}
    for ds in range(4):
        pre[18 + 4 * ds] = [("WAITLG", ("k1", ds))]
        pre[34 + 4 * ds] = [("WAITLG", ("v1", ds))]
        if cur == "S": pre[52 + 4 * ds] = [("WAITLG", ("k2", ds))]
    qx = Q(mask(S0) if mask_even else [], first=35)
    n = step(A, mf, [qx], pre=pre, post=post, s1=s1, drain=[qx])
    if n: print("window", prev, cur, "over", n, file=sys.stderr)

V_FL = 14
def ld_flags(tag="fl"):
    return ("buffer_load_dword v%d, v15, %s, s%d offen sc1" % (V_FL, sr(SRD_WS, 4), S_FB), tag)

def fin(A, k, prev, last):
    gp = "S" if prev == "D" else "L"
    A(["s_waitcnt vmcnt(1)", "s_barrier", CARRY, VRD] + SLA)
    A.vm = []
    qd = Q([ld_flags()] + wo_dma(1, 0, V_T + 4, "wc") + wo_dma(2, 0x8000, V_T + 4, "wc", rd=False))
    qr = Q(rd(KF, 0, "k") + ["v_xor_b32 v%d, s%d, v%d" % (V_T, S_SLOT, V_L16X)])
    step(A, pv("L", P1), [qr, qd], post=sm2(S0, P0), drain=[qr])
    qr = Q(rd(VF, 16384, "v"))
    step(A, qk("L", S0), [qr, qd], pre={0: [("WAITLG", ("k", 0))], 8: [("WAITLG", ("k", 1))]}, post=sm1(S1, P1), drain=[qr])
    if prev == "S": qr = Q(rd(KF, 24576, "k"))
    else: qr = Q(rd(KF, 16384, "k", va=V_T))
    step(A, pv(gp, P0), [qr, qd], pre={0: [("WAITLG", ("v", 0))], 8: [("WAITLG", ("v", 1))]}, post=sm2(S1, P1), drain=[qr])
    lab = A.uid("nomask")
    A("s_cmp_lg_u32 s%d, 3" % S_W)
    A("s_cbranch_scc1 %s" % lab)
    A(mask(S0))
    A.label(lab)
    smq = []
    m = sm(S0, P0)
    for g in sorted(m): smq += m[g]
    ex = [x for x in smq if x.startswith("v_exp")]; cv = [x for x in smq if x.startswith("v_cvt")]
    order = ex[:3]
    for i in range(3, 16):
        order.append(ex[i])
        if i & 1: order.append(cv[(i - 3) >> 1])
    order += ["s_nop 0", cv[7]]
    qs = Q(order, eager=True)
    sel = [("WAITVM", "fl"), "v_cmp_eq_u32 vcc, 0, v%d" % V_FL, "s_waitcnt lgkmcnt(0)", "s_and_b32 s%d, vcc_lo, s%d" % (S_SOK, S_M4)]
    for hx in range(1, 4): sel.append("s_cselect_b32 s%d, s%d, s%d" % (S_T0 + hx, S_LIM, S_CS + hx))
    ql = Q(last)
    if prev == "S":
        qr = Q(rd(VF, 16384, "v", va=V_T), cap=1)
        step(A, pv("L", P1, vf=KF), [qs, qr, qd], pre={0: [("WAITLG", ("k", 0))], 8: [("WAITLG", ("k", 1))]}, drain=[qr, qs, qd], cap=3)
        A(sel)
        step(A, pv("L", P0), [ql])
    else:
        step(A, pv("L", P1), [qs, qd], drain=[qs, qd], cap=3)
        A(sel)
        step(A, pv("L", P0, vf=KF), [ql])
    return ql.items

def epi_list(grp, pk=False):
    g = 0 if grp == "S" else 1
    base = S_CTXS + g
    T = V_T
    o = []
    for qt in range(2):
        o.append("v_accvgpr_read_b32 v%d, a%d" % (T + qt, LREG + g * 8 + qt * 4))
    for qt in range(2):
        o.append("v_rcp_f32 v%d, v%d" % (T + 2 + qt, T + qt))
    o.append("v_max_f32 v%d, v%d, v%d" % (T, T, T + 1))
    o.append("v_cmp_nlt_f32 vcc, v%d, s%d" % (T, S_LIM))
    for ds in range(4):
        for qt in range(2):
            t = OREG + g * 64 + qt * 32 + ds * 8
            d = (FRS, FRL)[g] + 8 * ds + 4 * qt
            if not pk:
                for i in range(8): o.append("v_mul_f32 v%d, v%d, v%d" % (t + i, t + i, T + 2 + qt))
            for i in range(0, 8 if pk else 0, 2):
                o.append("v_pk_mul_f32 %s, %s, %s op_sel:[0,%d] op_sel_hi:[1,%d]" % (vr(t + i, 2), vr(t + i, 2), vr(T + 2, 2), qt, qt))
            for i in range(4): o.append("v_cvt_pk_bf16_f32 v%d, v%d, v%d" % (d + i, t + 2 * i, t + 2 * i + 1))
            if ds == 0 and qt == 0: o.append("s_or_b64 %s, %s, vcc" % (sr(S_BAD, 2), sr(S_BAD, 2)))
            o.append(("buffer_store_dwordx4 %s, v%d, %s, s%d offen offset:%d sc1" % (vr(d, 4), V_L16 if ds < 2 else V_L4K, sr(SRD_WS, 4), base, (ds & 1) * 2048 + qt * 1024), "cst"))
    return o
def epi_chk_mf(grp):
    f = (FRS, FRL)[grp == "L"]
    d = vr(V_T + 4, 4)
    return ["%s %s, %s, %s, %s" % (MF, d, vr(f + 8 * i, 4), vr(f + 8 * i + 4, 4), d if i else "0") for i in range(4)]
def epi_chk():
    T = V_T + 4
    return ["v_add_f32 v%d, |v%d|, |v%d|" % (T, T, T + 1), "v_add_f32 v%d, |v%d|, |v%d|" % (T + 2, T + 2, T + 3),
            "v_add_f32 v%d, v%d, v%d" % (T, T, T + 2), "v_cmp_ngt_f32 vcc, -v%d, v%d" % (V_NEG, T)]
BADOR = "s_or_b64 %s, %s, vcc" % (sr(S_BAD, 2), sr(S_BAD, 2))
def epilogue(A, grp):
    A(epi_list(grp, True))
    A("s_nop 0")
    A(epi_chk_mf(grp))
    A("s_nop 7")
    A(epi_chk())
    A("s_nop 0")
    A(BADOR)

def zero_a():
    return ["v_accvgpr_write_b32 a%d, 0" % r for r in list(range(VF, VF + 32)) + list(range(LREG, LREG + 16))]
def zero_o(g): return ["v_mov_b32 v%d, 0" % (OREG + 64 * g + r) for r in range(64)]
def zero_p(): return ["v_mov_b32 v%d, 0" % (P1 + r) for r in range(8)]

def setup():
    o = []
    T = V_T
    o += ["s_lshl_b32 s%d, s%d, 13" % (S_W8K, S_W), "s_movk_i32 s%d, 0x1000" % S_4K, "s_mov_b32 s%d, 0" % S_REDO,
          "s_mov_b32 s%d, 0x4e800000" % S_LIM]
    o += ["v_mov_b32 v%d, 0xff800000" % V_NEG, "v_xor_b32 v%d, 0x10000, v%d" % (V_L16X, V_L16)]
    for r in range(4): o.append("v_mov_b32 v%d, 0xff800000" % (V_M + r))
    o.append("v_mov_b32 v%d, 0x3f803f80" % T)
    for r in range(4):
        o.append("v_accvgpr_write_b32 a%d, v%d" % (ONES + r, T))
        o.append("v_accvgpr_write_b32 a%d, 0" % (ZERO + r))
    o += ["v_lshrrev_b32 v%d, 4, v%d" % (T, V_LANE), "v_lshlrev_b32 v%d, 2, v%d" % (T, T), "v_and_b32 v%d, 15, v%d" % (T + 1, V_LANE),
          "v_sub_u32 v%d, v%d, v%d" % (T + 1, T + 1, T)]
    for r in range(4):
        o.append("v_cmp_gt_i32 %s, %d, v%d" % (sr(MSK + 2 * r, 2), r, T + 1))
    o += ["s_lshl_b32 s%d, s%d, 5" % (S_X0, S_GS), "s_add_u32 s%d, s%d, s%d" % (S_X1, S_X0, S_H),
          "s_lshl_b32 s%d, s%d, 2" % (S_FB, S_X0), "s_add_u32 s%d, s%d, 0x%x" % (S_FB, S_FB, CTXF_OFF),
          "s_lshl_b32 s%d, s%d, 2" % (S_FA, S_X1), "s_add_u32 s%d, s%d, 0x%x" % (S_FA, S_FA, CTXF_OFF),
          "s_lshl_b32 s%d, s%d, 14" % (S_X1, S_X1), "s_add_u32 s%d, s%d, 0x%x" % (S_CTXS, S_X1, CTX_OFF),
          "s_add_u32 s%d, s%d, 0x2000" % (S_CTXL, S_CTXS)]
    for hx in range(1, 4):
        o += ["s_xor_b32 s%d, s%d, 0x%x" % (S_CS + hx, S_CTXS, hx << 14), "s_xor_b32 s%d, s%d, 0x%x" % (S_CL + hx, S_CTXL, hx << 14)]
    o += ["s_andn2_b32 s%d, s%d, 3" % (S_X0, S_H), "s_lshl_b32 s%d, 15, s%d" % (S_M4, S_X0),
          "v_add_u32 v%d, 0x20000, v%d" % (V_LW, V_WADDR), "v_add_u32 v%d, 0x1000, v%d" % (V_L4K, V_L16),
          "v_and_b32 v15, 31, v%d" % V_LANE, "v_lshlrev_b32 v15, 2, v15"]
    o += ["s_lshr_b32 s%d, s%d, 1" % (S_X0, S_W),
          "v_subrev_u32 v%d, s%d, v%d" % (T, S_X0, V_LANE),
          "s_lshl_b32 s%d, s%d, 2" % (S_X1, S_J), "s_add_u32 s%d, s%d, 4" % (S_X1, S_X1),
          "v_lshlrev_b32 v%d, 1, v%d" % (T + 1, T), "v_subrev_u32 v%d, s%d, v%d" % (T + 1, S_X1, T + 1),
          "v_max_i32 v%d, v%d, v%d" % (T + 1, T + 1, T),
          "v_add_u32 v%d, 1, v%d" % (T + 2, T + 1),
          "v_sub_u32 v%d, 64, v%d" % (T + 3, T),
          "v_cmp_gt_i32 vcc, s%d, v%d" % (S_X1, T), "s_and_b32 s%d, s%d, 1" % (S_DOFF, S_W), "s_nop 0",
          "v_cndmask_b32 v%d, v%d, v%d, vcc" % (T + 2, T + 2, T + 3),
          "s_cmp_eq_u32 s%d, 1" % S_DOFF,
          "s_cselect_b64 vcc, -1, 0",
          "s_sub_u32 s%d, s%d, 3" % (S_X1, S_X1),
          "v_cndmask_b32 v%d, v%d, v%d, vcc" % (T + 1, T + 1, T + 2),
          "s_cmp_eq_u32 s%d, 1" % S_DOFF,
          "s_cselect_b32 s%d, s%d, 0" % (S_X1, S_X1),
          "s_sub_u32 s%d, 32, s%d" % (S_DOFF, S_DOFF),
          "s_lshl_b32 s%d, s%d, 13" % (S_X0, S_X0),
          "s_lshl_b32 s%d, s%d, 20" % (S_EVT, S_H),
          "s_add_u32 s%d, s%d, s%d" % (S_X0, S_X0, S_EVT),
          "v_lshlrev_b32 v%d, 14, v%d" % (T + 1, T + 1),
          "v_add_u32 v%d, s%d, v%d" % (T + 1, S_X0, T + 1),
          "v_mov_b32 v%d, 0x40000000" % (T + 2),
          "v_cmp_gt_i32 vcc, s%d, v%d" % (S_X1, T), "s_nop 1",
          "v_cndmask_b32 v%d, v%d, v%d, vcc" % (T + 1, T + 1, T + 2),
          "v_cmp_lt_i32 vcc, s%d, v%d" % (S_DOFF, T), "s_nop 1",
          "v_cndmask_b32 v%d, v%d, v%d, vcc" % (V_TAB, T + 1, T + 2)]
    o += ["s_lshl_b32 s%d, s%d, 17" % (S_X0, S_H), "s_lshl_b32 s%d, s%d, 15" % (S_X1, S_W), "s_add_u32 s%d, s%d, s%d" % (S_X0, S_X0, S_X1),
          "s_and_b32 s%d, s%d, 3" % (S_X1, S_H), "s_lshl_b32 s%d, s%d, 8" % (S_X1, S_X1), "s_add_u32 s%d, s%d, s%d" % (S_WOWN, S_X0, S_X1)]
    o += ["v_lshrrev_b32 v%d, 5, v%d" % (T, V_LANE), "v_lshlrev_b32 v%d, 14, v%d" % (T, T), "v_bfe_u32 v%d, v%d, 3, 2" % (T + 1, V_LANE),
          "v_lshl_add_u32 v%d, v%d, 10, v%d" % (T, T + 1, T), "v_and_b32 v%d, 1, v%d" % (T + 1, V_LANE), "v_lshl_add_u32 v%d, v%d, 6, v%d" % (T, T + 1, T),
          "v_bfe_u32 v%d, v%d, 1, 2" % (T + 1, V_LANE), "v_bfe_u32 v%d, v%d, 4, 1" % (T + 2, V_LANE), "v_xor_b32 v%d, v%d, v%d" % (T + 1, T + 1, T + 2),
          "v_lshl_add_u32 v%d, v%d, 4, v%d" % (T, T + 1, T), "v_xor_b32 v%d, 32, v%d" % (T + 1, T), "v_add_u32 v%d, 3072, v%d" % (T + 1, T + 1),
          "v_accvgpr_write_b32 a%d, v%d" % (A_DA, T), "v_accvgpr_write_b32 a%d, v%d" % (A_DA + 1, T + 1)]
    return o

def wo_dma(hx, lds, t, tag, rd=True):
    o = []
    if rd: o += ["v_accvgpr_read_b32 v%d, a%d" % (t + i, A_DA + i) for i in range(2)]
    o.append("s_add_u32 m0, s%d, 0x%x" % (S_W8K, lds))
    o.append("s_xor_b32 s%d, s%d, 0x%x" % (S_DOFF, S_WOWN, hx << 17))
    for n in range(8):
        if n == 4: o.append(M0B)
        if n and n % 2 == 0: o.append("s_add_u32 s%d, s%d, %d" % (S_DOFF, S_DOFF, 6144 if n & 2 else 128 - 6144) if n != 4 else
                                      "s_sub_u32 s%d, s%d, %d" % (S_DOFF, S_DOFF, 6144 - 128))
        o.append(("buffer_load_dwordx4 v%d, %s, s%d offen offset:%d lds" % (t + (n & 1), sr(SRD_WO, 4), S_DOFF, 1024 * (n & 3)), tag))
    return o

def rowmax(Sb, g):
    o = []
    T = V_T
    for qt in range(2):
        s = Sb + qt * 8; t = T + 2 * qt
        o.append("v_max3_f32 v%d, v%d, v%d, v%d" % (t, s, s + 1, V_M + g * 2 + qt))
        o.append("v_max3_f32 v%d, v%d, v%d, v%d" % (t + 1, s + 2, s + 3, s + 4))
        o.append("v_max3_f32 v%d, v%d, v%d, v%d" % (t, t, s + 5, s + 6))
        o.append("v_max3_f32 v%d, v%d, v%d, v%d" % (t, t, t + 1, s + 7))
    for sw in ("v_permlane32_swap_b32", "v_permlane16_swap_b32"):
        for qt in range(2): o.append("v_mov_b32 v%d, v%d" % (T + 2 * qt + 1, T + 2 * qt))
        o.append("s_nop 1")
        for qt in range(2): o.append("%s v%d, v%d" % (sw, T + 2 * qt, T + 2 * qt + 1))
        o.append("s_nop 0")
        for qt in range(2): o.append("v_max_f32 v%d, v%d, v%d" % (T + 2 * qt, T + 2 * qt, T + 2 * qt + 1))
    for qt in range(2):
        for i in range(8): o.append("v_sub_f32 v%d, v%d, v%d" % (Sb + qt * 8 + i, Sb + qt * 8 + i, T + 2 * qt))
        for r in range(4): o.append("v_sub_f32 v%d, 0, v%d" % (CIN + g * 8 + qt * 4 + r, T + 2 * qt))
    return o

def dma_seq():
    return [TTI, RDL] + SLA + [M0A, VDM] + [dmai(n) for n in range(4)] + [M0B, "s_nop 0"] + [dmai(n) for n in range(4, 8)]

def prefetch(A):
    A("s_mov_b32 s%d, -1" % S_TT)
    A("s_mov_b32 s%d, 0x8000" % S_SLOT)
    A("s_mov_b64 %s, 0" % sr(S_BAD, 2))
    A("s_mov_b32 s%d, 0" % S_SDONE)
    A("s_mov_b32 s%d, s%d" % (S_POI, S_PBW))
    A(["v_mov_b32 v%d, -1" % V_PZ, "v_mov_b32 v%d, -1" % (V_PZ + 1), "v_lshlrev_b32 v%d, 3, v%d" % (V_L8, V_LANE)])
    for i in range(3): A(dma_seq())

def attention(k, last, w0_q=None):
    A = k.A; N = k.name
    A.label("att_w0")
    A(["s_waitcnt vmcnt(16) lgkmcnt(0)", "s_barrier", VRD])
    A(rd(KF, 0, "k"))
    qd = Q(wo_dma(0, 0x20000, V_T + 4, None) + [x for x in dma_seq() if x != "s_nop 0"] + [POI, TTI, RDL], cap=2)
    qz = Q(zero_o(1))
    step(A, qk("S", S0, zero=True), [qd, qz], pre={0: [("WAITLG", ("k", 0))], 8: [("WAITLG", ("k", 1))]}, vmgap=2)
    step(A, qk("L", S1, zero=True), [qd, qz], drain=[qd, qz], vmgap=2)
    A("s_cmp_lg_u32 s%d, 0" % S_GS)
    A("s_cbranch_scc1 w0_nomask")
    A(mask(S0))
    A.label("w0_nomask")
    A(rowmax(S0, 0))
    A(rowmax(S1, 1))
    m = sm1(S0, P0)
    for g in sorted(m)[:-1]:
        if m[g][0].startswith("v_cvt"): A("s_nop 0")
        A(m[g])
    A("s_waitcnt vmcnt(25) lgkmcnt(0)")
    A("s_add_u32 s%d, s%d, 3" % (S_EVT, S_GS))
    A("s_cmp_lt_u32 s%d, 2" % S_GS)
    A("s_cbranch_scc1 dd_done")
    A.raw(".p2align 3")
    A.label("dd_loop")
    window(A, "D", "D", tail=["s_cmp_lg_u32 s%d, s%d" % (S_TT, S_EVT)], br="s_cbranch_scc1 dd_loop")
    A.label("dd_done")
    A("s_cmp_eq_u32 s%d, 0" % S_GS)
    A("s_cbranch_scc1 ds_win")
    window(A, "D", "D", mask_even=True, tail=["s_cmp_eq_u32 s%d, 35" % S_TT], br="s_cbranch_scc1 fin_d")
    A.label("ds_win")
    window(A, "D", "S", tail=["s_lshl_b32 s%d, s%d, 2" % (S_EVT, S_J), "s_add_u32 s%d, s%d, 8" % (S_EVT, S_EVT),
                              "s_min_u32 s%d, s%d, 35" % (S_EVT, S_EVT), "s_cmp_eq_u32 s%d, 3" % S_W], br="s_cbranch_scc1 ss_chk")
    A("s_nop 6")
    A(mask(S1))
    A.label("ss_chk")
    A("s_cmp_lg_u32 s%d, s%d" % (S_TT, S_EVT))
    A("s_cbranch_scc1 ss_loop")
    A("s_cmp_eq_u32 s%d, 35" % S_EVT)
    A("s_cbranch_scc1 fin_s")
    A("s_cmp_lg_u32 s%d, 0" % S_SDONE)
    A("s_cbranch_scc1 s_flag")
    epilogue(A, "S")
    A("s_mov_b32 s%d, 1" % S_SDONE)
    A("s_add_u32 s%d, s%d, 2" % (S_EVT, S_EVT))
    A("s_branch ss_loop")
    A.label("s_flag")
    A("s_mov_b32 s%d, 35" % S_EVT)
    A("s_cmp_lg_u64 %s, 0" % sr(S_BAD, 2))
    A("s_cbranch_scc1 ss_loop")
    A("s_waitcnt vmcnt(18)")
    A(flag_st(1))
    A("s_mov_b32 s%d, 0x%x" % (S_CTXS, DBG_OFF))
    A.raw(".p2align 3")
    A.label("ss_loop")
    window(A, "S", "S", tail=["s_cmp_lg_u32 s%d, s%d" % (S_TT, S_EVT)], br="s_cbranch_scc1 ss_loop")
    A("s_branch ss_chk")
    A.label("fin_d")
    r1 = fin(A, k, "D", last)
    vm1, lg1 = list(A.vm), list(A.lg)
    A("s_branch att_epi")
    A.label("fin_s")
    r2 = fin(A, k, "S", last)
    assert r1 == r2 and vm1 == A.vm and lg1 == A.lg
    A.label("att_epi")
    k.stamp("a_end")
    A("s_cmp_lg_u32 s%d, 0" % S_SDONE)
    A("s_cbranch_scc1 att_epi_l")
    epilogue(A, "S")
    A.vm = vm1
    A.label("att_epi_l")
    return r1

def flag_st(val):
    return ["v_mov_b32 v%d, %d" % (V_T + 1, val), "s_mov_b64 exec, 1",
            "buffer_store_dword v%d, off, %s, s%d sc1" % (V_T + 1, sr(SRD_WS, 4), S_FA), "s_mov_b64 exec, -1"]

def redo(k):
    A = k.A
    A.label("att_redo")
    A("s_waitcnt vmcnt(0) lgkmcnt(0)")
    A("s_barrier")
    A("s_mov_b32 s%d, 1" % S_REDO)
    for g, sg in ((0, S_GS), (1, S_GL)):
        A("s_mov_b32 s%d, 0" % S_TT)
        A("s_lshl_b32 s%d, s%d, 20" % (S_X0, S_H))
        A.label("redo_loop%d" % g)
        A("s_add_u32 s%d, s%d, 0x1000" % (S_X1, S_X0))
        for f in range(8):
            A("buffer_load_dwordx4 %s, v%d, %s, s%d offen offset:%d sc1" % (ar(KF + 4 * f, 4), V_L16, sr(SRD_WS, 4), S_X1 if f >= 4 else S_X0, 1024 * (f & 3)))
        A("s_waitcnt vmcnt(0)")
        A(qk("SL"[g], S0, zero=True))
        A("s_nop 7")
        A("s_cmp_lg_u32 s%d, s%d" % (S_TT, sg))
        A("s_cbranch_scc1 redo_nm%d" % g)
        A(mask(S0))
        A.label("redo_nm%d" % g)
        for qt in range(2):
            m = V_M + g * 2 + qt
            for i in range(4):
                A("v_max3_f32 v%d, v%d, v%d, v%d" % (m, m, S0 + qt * 8 + 2 * i, S0 + qt * 8 + 2 * i + 1))
        A("s_add_u32 s%d, s%d, 0x4000" % (S_X0, S_X0))
        A("s_add_u32 s%d, s%d, 1" % (S_TT, S_TT))
        A("s_cmp_le_u32 s%d, s%d" % (S_TT, sg))
        A("s_cbranch_scc1 redo_loop%d" % g)
    prefetch(A)
    A(zero_a() + zero_o(0) + zero_p())
    A("s_branch att_w0")
```

```python
import sys, math, struct
KV_OFF = 0
CTX_OFF = 32 << 20
MISC_OFF = 52 << 20
KVF_OFF = MISC_OFF
CTXF_OFF = MISC_OFF + 4096
RKEY_OFF = MISC_OFF + 8192
GATE_OFF = MISC_OFF + 16384
YB_OFF = MISC_OFF + 24576
HB_OFF = MISC_OFF + 40960
ZERO_Q = 14336
PB_OFF = 64 << 20
OOB = 0x7f000000
WOF_OFF = 48 << 20
SPIN_MAX = 20000
DBG_OFF = 56 << 20
STAMP_OFF = 88 << 20
WS_SIZE = 96 << 20
MF = "v_mfma_f32_16x16x32_bf16"
QSCALE = math.log2(math.e) / math.sqrt(128.0)
def f32hex(x): return "0x%08x" % struct.unpack("<I", struct.pack("<f", x))[0]

S_W, S_H, S_J, S_GS, S_GL = 3, 4, 5, 6, 7
SRD_C, SRD_X, SRD_UK, SRD_UV, SRD_WQ, SRD_WS = 8, 12, 16, 20, 24, 28
S_KROW, S_QROW, S_XM = 32, 34, 36
S_WM, S_WOFF, S_KV = 40, 41, 42
S_SC = 44
S_WOFW = 43
S_LIM = 45
S_T0, S_T1, S_T2, S_T3, S_T4, S_T5 = 46, 47, 48, 49, 50, 51
S_TT, S_EVT, S_SLOT, S_W8K = 52, 53, 54, 55
SRD_DBG = 60
PTR = 64
MSK = 64
S_BAD = 72
S_4K, S_REDO, S_SDONE, S_CTXS, S_CTXL, S_DOFF, S_X0, S_X1 = 76, 77, 78, 79, 80, 81, 82, 83
STAMPS = [84, 86, 88, 90, 92, 94, 96, 98, 100, 56, 58, 38]
V_LANE, V_L16, V_OFFX, V_OFFW, V_WADDR, V_XADDR = 1, 2, 4, 8, 12, 16
XB = 65536
WF = 64
ACC = 128
QREG = 0
V_RD, V_DM, V_TAB, V_NEG, V_L16X, V_M = 3, 4, 5, 6, 7, 8
S0, S1, P0, P1, CIN, OREG, V_T = 16, 32, 48, 56, 64, 128, 88
KF, VF, LREG, ONES, ZERO = 64, 96, 128, 144, 148
def qfrag(rt, ds):
    return QREG + ((ds >> 1) * 8 + rt * 2 + (ds & 1)) * 4
def cvt8(t):
    return ["v_cvt_pk_bf16_f32 v%d, v%d, v%d" % (t + i, t + 2 * i, t + 2 * i + 1) for i in range(4)]
S_I0, S_I1 = 37, 43
SRD_WO, SRD_G, SRD_U, SRD_D, SRD_OUT = 8, 80, 72, 60, 16
S_POI = 44
V_PZ, V_L8 = 96, 98
A_DA = 152
S_PBW = 32
S_CS, S_CL, S_FA, S_FB, S_PBR, S_XO, S_M4, S_SOK, S_ROW = 19, 22, 26, 27, 33, 34, 35, 36, 40
V_WD2 = 80
V_L4K, V_LW = 12, 13
S_WOWN = 41
FRS, FRL = 128, 160
S_PR, S_PG = 80, 82
S_F0 = 68
L_MW, L_XS, L_SCR = 0x24000, 0x8000, 0x1A000
LOG2E = math.log2(math.e)
```

```python
import sys, math, struct
from asmlib import *
from sched import *

from defs import *

class K:
    def __init__(self, A, name, opts):
        self.A = A; self.name = name; self.opts = opts; self.nst = 0; self.stn = []
    def stamp(self, nm):
        o = self.opts
        if o.get("festamps") and nm not in ("start", "bar0", "s0", "s1", "s2", "s3", "s4", "s5", "fe", "kvf", "aux", "end"): return
        if not o.get("festamps") and nm in ("bar0", "a_pf"): return
        if o.get("stamps") or o.get("cyc"):
            k = STAMPS[self.nst]; self.nst += 1; self.stn.append(nm)
            self.A("%s s[%d:%d]" % ("s_memrealtime" if o.get("stamps") else "s_memtime", k, k + 1))

def prologue(k):
    A = k.A
    A("s_cmp_ge_u32 s2, 256")
    A("s_cbranch_scc1 %s_end" % k.name)
    A("s_load_dwordx8 s[64:71], s[0:1], 0")
    A("s_load_dwordx2 s[72:73], s[0:1], 32")
    A("s_load_dwordx4 s[76:79], s[0:1], 104")
    A("s_load_dwordx2 s[%d:%d], s[0:1], 56" % (S_PR, S_PR + 1))
    A("s_load_dwordx2 s[%d:%d], s[0:1], 88" % (S_PG, S_PG + 1))
    A("v_lshrrev_b32 v26, 6, v0")
    A("v_and_b32 v1, 63, v0")
    A("v_readfirstlane_b32 s3, v26")
    A("s_and_b32 s46, s2, 7")
    A("s_lshr_b32 s47, s2, 3")
    A("s_lshl_b32 s4, s46, 2")
    A("s_and_b32 s48, s47, 3")
    A("s_add_u32 s4, s4, s48")
    A("s_lshr_b32 s5, s47, 2")
    A("v_lshrrev_b32 v27, 4, v1")
    A("v_lshrrev_b32 v28, 3, v1")
    A("v_lshlrev_b32 v19, 13, v28")
    A("v_and_b32 v20, 1, v27")
    A("v_lshlrev_b32 v20, 1, v20")
    A("v_and_b32 v23, 7, v1")
    A("v_xor_b32 v21, v23, v20")
    for n in range(4):
        if n & 1:
            A("v_xor_b32 v22, 4, v21")
            A("v_lshl_add_u32 v22, v22, 4, v19")
        else:
            A("v_lshl_add_u32 v22, v21, 4, v19")
        A("v_add_u32 v%d, %d, v22" % (V_OFFW + n, (65536 - 1024) * n))
    A("v_lshlrev_b32 v19, 10, v28")
    A("v_xor_b32 v21, v23, v27")
    for n in range(4):
        if n & 1:
            A("v_xor_b32 v22, 4, v21")
            A("v_lshl_add_u32 v22, v22, 4, v19")
        else:
            A("v_lshl_add_u32 v22, v21, 4, v19")
        A("v_add_u32 v%d, %d, v22" % (V_OFFX + n, 7168 * n))
    A("s_lshl_b32 s%d, s3, 12" % S_WM)
    A("s_lshl_b32 s46, s4, 8")
    A("s_lshl_b32 s47, s3, 18")
    A("s_add_u32 s%d, s46, s47" % S_WOFF)
    A("s_lshr_b32 s47, s3, 1")
    A("s_lshl_b32 s47, s47, 18")
    A("s_add_u32 s46, s46, s47")
    A("s_and_b32 s47, s3, 1")
    A("s_lshl_b32 s47, s47, 7")
    A("s_add_u32 s%d, s46, s47" % S_WOFW)
    A("s_mul_i32 s%d, s3, 24576" % S_XM)
    A("s_add_u32 s%d, s%d, %d" % (S_XM, S_XM, XB))
    A("s_lshl_b32 s%d, s5, 18" % S_KROW)
    A("s_lshl_b32 s46, s3, 16")
    A("s_add_u32 s%d, s%d, s46" % (S_KROW, S_KROW))
    A("s_add_u32 s%d, s%d, 32768" % (S_KROW + 1, S_KROW))
    A("s_waitcnt lgkmcnt(0)")
    srd(A, SRD_UK, PTR + 6, 4 << 20)
    srd(A, SRD_C, PTR + 2, 2 << 20)

def prologue2(k):
    A = k.A
    A("s_lshl_b32 s%d, s5, 2" % S_GS)
    A("s_add_u32 s%d, s%d, s3" % (S_GS, S_GS))
    A("s_sub_u32 s%d, 63, s%d" % (S_GL, S_GS))
    A("s_lshl_b32 s%d, s%d, 15" % (S_QROW, S_GS))
    A("s_lshl_b32 s%d, s%d, 15" % (S_QROW + 1, S_GL))
    A("s_lshl_b32 s46, s4, 6")
    A("s_lshl_b32 s47, s5, 3")
    A("s_add_u32 s46, s46, s47")
    A("s_lshl_b32 s47, s3, 1")
    A("s_add_u32 s46, s46, s47")
    A("s_lshl_b32 s%d, s46, 14" % S_KV)
    A("s_mov_b32 s%d, %s" % (S_SC, f32hex(QSCALE)))
    A("v_bfe_u32 v18, v1, 2, 2")
    A("v_lshl_add_u32 v19, v27, 3, v18")
    A("v_lshlrev_b32 v19, 7, v19")
    A("v_and_b32 v21, 3, v1")
    A("v_lshl_add_u32 v19, v21, 3, v19")
    A("v_lshrrev_b32 v18, 1, v18")
    A("v_add_u32 v18, v18, v20")
    for dt in range(4):
        A("v_xor_b32 v21, %d, v18" % dt)
        A("v_lshl_add_u32 v%d, v21, 5, v19" % (V_WADDR + dt))
    A("v_and_b32 v21, 15, v1")
    A("v_lshlrev_b32 v21, 7, v21")
    A("v_add_u32 v21, s%d, v21" % S_XM)
    A("v_bfe_u32 v23, v1, 1, 3")
    A("v_xor_b32 v23, v23, v27")
    A("v_lshl_add_u32 v%d, v23, 4, v21" % V_XADDR)
    A("v_xor_b32 v23, 4, v23")
    A("v_lshl_add_u32 v%d, v23, 4, v21" % (V_XADDR + 1))
    A("v_lshlrev_b32 v%d, 4, v1" % V_L16)
    srd(A, SRD_UV, PTR + 8, 4 << 20)
    srd(A, SRD_X, PTR + 0, 2 << 20)
    srd(A, SRD_WQ, PTR + 4, 4 << 20)
    if k.opts.get("wsh"):
        A("s_add_u32 s%d, s%d, 0x%x" % (PTR + 14, PTR + 14, k.opts["wsh"] << 20))
        A("s_addc_u32 s%d, s%d, 0" % (PTR + 15, PTR + 15))
    srd(A, SRD_WS, PTR + 14, WS_SIZE)
    srd(A, SRD_DBG, PTR + 12, 256)

STAGES = []
def set_stages(opts):
    def mat(m, pre, post):
        o = [(m, h, k) for h in range(2) for k in range(0, pre, 4)]
        o += [(m, None, k) for k in range(pre, 16 - post, 2)]
        o += [(m, h, k) for h in range(2) for k in range(16 - post, 16, 4)]
        return o
    STAGES[:] = mat(0, 0, opts.get("ksk", 8)) + mat(1, 16, 0) + mat(2, opts.get("qsk", 4), 4)
    assert len(STAGES) == 24
def stepmap(kap):
    m, h, k = STAGES[kap >> 2]
    if h is None: return 2 * m + (kap & 1), k + ((kap >> 1) & 1)
    return 2 * m + h, k + (kap & 3)
def w_dma(gam):
    m, h, k = STAGES[gam]
    sw = (SRD_UK, SRD_UV, SRD_WQ)[m]
    out = ["s_add_u32 m0, s%d, %d" % (S_WM, (gam & 3) * 16384),
           "s_add_u32 s%d, s%d, %d" % (S_T0, S_WOFW, k * 32 * 8192) if h is None else
           "s_add_u32 s%d, s%d, %d" % (S_T0, S_WOFF, k * 32 * 8192 + h * 128)]
    for n in range(4):
        out.append(("buffer_load_dwordx4 v%d, %s, s%d offen offset:%d lds" % (V_OFFW + n, sr(sw, 4), S_T0, 1024 * n), ("w", gam)))
    return out

def x_dma(ph, c):
    sx, rows = (SRD_C, S_KROW) if ph == 0 else (SRD_X, S_QROW)
    out = []
    for hf in range(2):
        out.append("s_add_u32 m0, s%d, %d" % (S_XM, (c % 3) * 8192 + hf * 4096))
        out.append("s_add_u32 s%d, s%d, %d" % (S_T0, rows + hf, 128 * c))
        for n in range(4):
            out.append(("buffer_load_dwordx4 v%d, %s, s%d offen offset:%d lds" % (V_OFFX + n, sr(sx, 4), S_T0, 1024 * n), ("x", ph, c)))
    return out

def x_reads(c):
    return ["ds_read_b128 %s, v%d offset:%d" % (ar(16 * (2 * c + ksl) + 4 * rt, 4), V_XADDR + ksl, (c % 3) * 8192 + 2048 * rt)
            for ksl in range(2) for rt in range(4)]

def w_reads(kap):
    gam = kap >> 2
    off = (gam & 3) * 16384 + (kap & 3) * 4096
    wf = WF + 16 * (kap & 1)
    return ["ds_read_b64_tr_b16 %s, v%d offset:%d" % (vr(wf + 4 * dt + 2 * q, 2), V_WADDR + dt, off + 512 * q)
            for dt in range(4) for q in range(2)]

def accr(sig, i):
    if sig in (2, 5): return 32 + i if i < 32 else 64 + i
    return (128, 192, 0, 128, 192)[sig] + i
def acc_tile(sig, rt, dt):
    if sig >> 1 == 1:
        return accr(sig, (((rt >> 1) * 4 + dt) * 2 + (rt & 1)) * 4)
    return accr(sig, rt * 16 + dt * 4)

def epi(sig, sc1):
    out = []
    if sig < 2:
        for kbl in range(2):
            out.append("s_add_u32 s%d, s%d, %d" % (S_T1, S_KV, kbl * 16384 + sig * 4096))
            for dsl in range(2):
                for kt in range(2):
                    t = accr(sig, (kbl * 2 + kt) * 16 + dsl * 8)
                    for i in range(8):
                        out.append("v_mul_f32 v%d, s%d, v%d" % (t + i, S_SC, t + i))
                    out += cvt8(t)
                    out.append(("buffer_store_dwordx4 %s, v%d, %s, s%d offen offset:%d%s" % (vr(t, 4), V_L16, sr(SRD_WS, 4), S_T1, (dsl * 2 + kt) * 1024, sc1), ("st", sig)))
    elif sig < 4:
        for kbl in range(2):
            out.append("s_add_u32 s%d, s%d, %d" % (S_T1, S_KV, kbl * 16384 + 8192 + (sig & 1) * 4096))
            for dt in range(4):
                t = accr(sig, (kbl * 4 + dt) * 8)
                out += cvt8(t)
                out.append(("buffer_store_dwordx4 %s, v%d, %s, s%d offen offset:%d%s" % (vr(t, 4), V_L16, sr(SRD_WS, 4), S_T1, dt * 1024, sc1), ("st", sig)))
    else:
        for rt in range(4):
            for dsl in range(2):
                t = accr(sig, rt * 16 + dsl * 8)
                out += cvt8(t)
                for i in range(4):
                    out.append("v_accvgpr_write_b32 a%d, v%d" % (qfrag(rt, (sig & 1) * 2 + dsl) + i, t + i))
    return out

def frontend(k, hooks=None):
    A = k.A; opts = k.opts
    hooks = hooks or {}
    sc1 = "" if opts.get("nosc1") else " sc1"
    if opts.get("stnt"): sc1 += " nt"
    set_stages(opts)
    qm = Q(cap=2, first=1)
    qe = Q(cap=2, first=4, period=opts.get("stp", 24))
    qe.vmprio = True
    tc = opts.get("tc", 16)
    if tc & 16:
        A(["s_lshl_b32 s%d, s2, 13" % S_T1, "s_lshl_b32 s%d, s3, 11" % S_T2, "s_add_u32 s%d, s%d, s%d" % (S_T1, S_T1, S_T2), "v_lshlrev_b32 v30, 5, v1",
           ("buffer_load_dword v31, v30, %s, s%d offen" % (sr(SRD_C, 4), S_T1), "pf")])
    A(w_dma(0))
    A(x_dma(0, 0))
    prologue2(k)
    if "pro0" in hooks: hooks["pro0"](A)
    late = opts.get("late", 3)
    rest = [x_dma(0, 1), w_dma(1), x_dma(0, 2), w_dma(2), w_dma(3)]
    for x in rest[:5 - late]: A(x)
    if "pro" in hooks: hooks["pro"](A)
    A(("WAITVM", ("x", 0, 0)))
    if "pro2" in hooks: hooks["pro2"](A)
    A("s_barrier")
    k.stamp("bar0")
    A(x_reads(0))
    A(w_reads(0))
    for x in rest[5 - late:]: qm.add(x)
    qm.add(hooks.get("pro1", []))
    qm.add(x_dma(0, 3))
    A("s_waitcnt lgkmcnt(0)")
    xr = {}; xd = {}
    rs = {0: (1, 4, 9, 12, 14, 17, 19), 1: (2, 5, 10, 13, 15, 18, 20), 2: (0, 3, 8, 11, 13, 16, 18), 3: (2, 6, 10, 14, 16, 18, 20)}[opts.get("xs", 1)]
    for c in range(1, 8): xr[rs[c - 1]] = (0, c)
    for c in range(4, 8): xd[rs[c - 4] + 1] = (0, c)
    x1 = opts.get("x1", 22); x1d = opts.get("x1d", 5)
    for c, kp in enumerate((x1, x1 + x1d, x1 + 2 * x1d, 51, 55, 59, 65, 69)): xd[kp] = (1, c)
    for c, kp in enumerate((50, 52, 54, 64, 68, 72, 84, 86)): xr[kp] = (1, c)
    sm = [stepmap(kap) for kap in range(96)]
    first = {sg: min(i for i in range(96) if sm[i][0] == sg) for sg in range(6)}
    last = {sg: max(i for i in range(96) if sm[i][0] == sg) for sg in range(6)}
    for kp, (ph, c) in xr.items():
        use = [i for i in range(96) if (sm[i][0] >= 4) == (ph == 1) and sm[i][1] >> 1 == c]
        assert kp < min(use), (kp, ph, c)
        if ph == 1: assert kp > max(i for i in range(64) if sm[i][1] >> 1 == c), (kp, c)
    rdat = {v: kp for kp, v in xr.items()}; rdat[0, 0] = -1
    for kp, (ph, c) in xd.items():
        prev = (ph, c - 3) if c >= 3 else (0, {0: 6, 1: 7, 2: 5}[c])
        assert kp > rdat[prev] and kp < rdat[ph, c], (kp, ph, c)
    reuse = {first[3]: 0, first[4]: 1, first[5]: 2}
    for kap in range(96):
        if kap and kap % 16 == 0 and opts.get("festamps"): k.stamp("s%d" % (kap // 16 - 1))
        sig, ks = sm[kap]
        if kap in reuse: assert not any(isinstance(x, tuple) and x[1] == ("st", reuse[kap]) for x in qe.items), (kap, len(qe.items))
        eps = [sg for sg in range(5) if last[sg] == kap - 1]
        if ("noqe", kap) in hooks: assert not qe.items, kap
        wf = WF + 16 * (kap & 1)
        mf = []
        for dt in range(4):
            for rt in range(4):
                acc = vr(acc_tile(sig, rt, dt), 4)
                c = "0" if ks == 0 else acc
                a, b = vr(wf + 4 * dt, 4), ar(16 * ks + 4 * rt, 4)
                if sig >> 1 == 1: a, b = b, a
                mf.append("%s %s, %s, %s, %s" % (MF, acc, a, b, c))
        tags = []
        if kap in xr: tags.append(("x",) + xr[kap])
        bar = (kap & 3) == 3 and kap < 95
        if bar: tags.append(("w", (kap >> 2) + 1))
        tags += hooks.get(("tag", kap), [])
        if opts.get("nostore"): tags = [t for t in tags if t[0] != "st"]
        if opts.get("nowdma"): tags = [t for t in tags if isinstance(t, str) or t[0] != "w" or t[1] < 4]
        if opts.get("nox2"): tags = [t for t in tags if t[0] != "x" or t[1] == 0]
        for t in tags: assert not any(isinstance(x, tuple) and x[1] == t for x in qm.items + qe.items), (kap, t)
        s1 = {}
        if tags:
            t = min(tags, key=lambda t: A.vm_after(t))
            s1[0] = [("WAITVM", t)]
        if bar and not opts.get("nobar"): s1[1] = ["s_barrier"]
        if ("pre", kap) in hooks: s1[2] = hooks[("pre", kap)]
        def lastw():
            assert not qr.items
            return ["s_waitcnt lgkmcnt(0)"]
        if kap < 95: s1[15] = lastw
        qr = Q(w_reads(kap + 1) if kap < 95 else [], cap=2, first=1 if bar else 0)
        if kap in xr: qr.add(x_reads(xr[kap][1]))
        if bar and (kap >> 2) + 4 < 24 and not opts.get("nowdma"): qm.add(w_dma((kap >> 2) + 4))
        if kap in xd and not (opts.get("nox2") and xd[kap][0] == 1): qm.add(x_dma(*xd[kap]))
        qm.add(hooks.get(("qm", kap), []))
        for ep in eps:
            e = epi(ep, sc1)
            if opts.get("nostore"): e = [x for x in e if not isinstance(x, tuple)]
            if opts.get("noepi"): e = []
            qe.add(e)
        qs = [qr, qm, qe]
        if kap in hooks: qs += hooks[kap](k)
        vg = opts.get("vg0", 2) if kap < 12 else opts.get("vg", 3)
        qm.first = 2 if bar else 0
        left = step(A, mf, qs, s1=s1, vmgap=vg)
        assert not qr.items
        if left: print("; kstep", kap, "leftover", left, file=sys.stderr)
    if opts.get("festamps"): k.stamp("s5")
    assert not qm.items and not qe.items
    A("s_nop 7")
    A(epi(5, sc1))

def dump_stamps(k):
    A = k.A
    regs_ = STAMPS[:k.nst]
    A("s_waitcnt lgkmcnt(0)")
    A("s_lshl_b32 s46, s2, 9")
    A("s_lshl_b32 s47, s3, 7")
    A("s_add_u32 s46, s46, s47")
    A("s_add_u32 s46, s46, %d" % STAMP_OFF)
    for i, r in enumerate(regs_):
        A("v_mov_b32 v%d, s%d" % (32 + 2 * i, r))
        A("v_mov_b32 v%d, s%d" % (33 + 2 * i, r + 1))
    A("v_mov_b32 v31, 0")
    A("s_mov_b64 exec, 1")
    for i in range((len(regs_) + 1) // 2):
        A("buffer_store_dwordx4 %s, v31, %s, s46 offen offset:%d" % (vr(32 + 4 * i, 4), sr(SRD_WS, 4), 16 * i))
    A("s_mov_b64 exec, -1")

def kernel(A, name, opts):
    k = K(A, name, opts)
    kernel_header(A, name)
    k.stamp("start")
    prologue(k)
    frontend(k)
    if opts.get("dumpq"):
        A("s_lshl_b32 s46, s2, 2")
        A("s_add_u32 s46, s46, s3")
        A("s_lshl_b32 s46, s46, 14")
        A("s_add_u32 s46, s46, %d" % DBG_OFF)
        for rt in range(4):
            A("s_add_u32 s47, s46, %d" % (rt * 4096))
            for ds in range(4):
                A("buffer_store_dwordx4 %s, v%d, %s, s47 offen offset:%d" % (ar(qfrag(rt, ds), 4), V_L16, sr(SRD_WS, 4), ds * 1024))
    if opts.get("stamps") or opts.get("cyc"):
        A("s_waitcnt vmcnt(0)")
        k.stamp("end")
        dump_stamps(k)
    A.label("%s_end" % name)
    A("s_endpgm")
    return k

HEAD = open("gated_mix__compressed_kv_cla__moe_arch_mod__prompt.s.ref").read().split("; Override launch")[0]
def build(out, opts):
    A = Asm()
    A.raw('.amdgcn_target "amdgcn-amd-amdhsa--gfx950"')
    A.raw(".text")
    name = "gated_mix__compressed_kv_cla__moe_arch_mod__prompt_kernel"
    k = kernel(A, name, opts)
    errs, n = check(A)
    for e in errs: print(e, file=sys.stderr)
    print("instructions:", n, "hazards:", len(errs), "maxout:", A.maxout, file=sys.stderr)
    l = "; @launch kernel=%s grid=(256,1,1) block=(256,1,1) lds=163840\n; stamps: %s" % (name, " ".join(k.stn))
    open(out, "w").write(HEAD + l + "\n" + A.text() + '.section .rodata,"a"\n' + kernel_desc(name, 512, 256))
if __name__ == "__main__":
    opts = {k.split('=')[0]: (int(k.split('=')[1]) if '=' in k else True) for k in sys.argv[2:]}
    build(sys.argv[1], opts)
```

```python
from asmlib import *
class Q:
    def __init__(self, items=None, cap=2, first=0, period=0, eager=False):
        self.items = list(items or []); self.cap = cap; self.first = first
        self.period = period; self.cool = 0; self.eager = eager; self.vmprio = False
    def add(self, items): self.items += list(items)
    def __len__(self): return len(self.items)

def head(x):
    return x[0] if isinstance(x, tuple) else x
def issalu(x):
    if isinstance(x, list): return False
    s = head(x)
    return s in ("WAITVM", "WAITLG") or s.startswith("s_")
def isvm(x):
    if isinstance(x, list): return any(isvm(y) for y in x)
    return head(x).startswith(("buffer_", "global_"))
def cost(ins):
    if isinstance(ins, list): return sum(cost(x) for x in ins)
    s = head(ins)
    if s == "RAW": return len(ins[1])
    if s.startswith(("v_exp", "v_rcp", "v_log", "v_readlane", "buffer_", "global_", "v_dot2")): return 2
    return 1
vmshared = [0]
def step(A, mfmas, queues, pre=None, post=None, cap=2, drain=(), vmgap=1, s1=None):
    pre = pre or {}; post = post or {}; s1 = s1 or {}
    ev = lambda v: v() if callable(v) else v
    over = 0
    if 0 in pre: A(ev(pre[0]))
    for i, m in enumerate(mfmas):
        A(m)
        room = cap
        if vmshared[0] > 0: vmshared[0] -= 1
        for q in queues:
            if q.cool > 0: q.cool -= 1
        n0 = len(A.lines)
        if i in s1: A(ev(s1[i]))
        if (i + 1) in pre: A(ev(pre[i + 1]))
        n = len([l for l in A.lines[n0:] if not l.strip().endswith(":")])
        if n: room -= n - 1
        else:
            for q in queues:
                if i >= q.first and q.items and issalu(q.items[0]):
                    if ' m0,' in head(q.items[0])[:16]: vmshared[0] = max(vmshared[0], 1)
                    A(q.items.pop(0)); break
        if i in post:
            A(post[i]); room -= sum(cost(x) for x in post[i])
        for q in queues:
            if q.vmprio and q.items and isvm(q.items[0]) and q.cool == 0 and vmshared[0] == 0 and room >= 2 and not queues[0].items:
                A(q.items.pop(0)); room -= 2; q.cool = q.period; vmshared[0] = vmgap
        for q in queues:
            if i < q.first: continue
            used = 0
            while q.items:
                it = q.items[0]
                c = cost(it); vm = isvm(it)
                if issalu(it) and not q.eager: break
                if vm and (q.cool > 0 or vmshared[0] > 0): break
                if c > cap and room == cap and used == 0: pass
                elif room < c or used + c > q.cap: break
                A(q.items.pop(0)); room -= c; used += c
                if vm: q.cool = q.period; vmshared[0] = vmgap
        if room < 0: over -= room
    left = 0
    for q in drain:
        left += len(q.items)
        for x in q.items: A(x)
        q.items = []
    return left + over
```

```python
from asmlib import *
from sched import *
from defs import *

def srdl(d, nbytes):
    return ["s_and_b32 s%d, s%d, 0xffff" % (d + 1, d + 1), "s_mov_b32 s%d, 0x%x" % (d + 2, nbytes), "s_mov_b32 s%d, 0x00020000" % (d + 3)]

DPP = ["row_shr:1 row_mask:0xf bank_mask:0xf bound_ctrl:0", "row_shr:2 row_mask:0xf bank_mask:0xf bound_ctrl:0",
       "row_shr:4 row_mask:0xf bank_mask:0xf bound_ctrl:0", "row_shr:8 row_mask:0xf bank_mask:0xf bound_ctrl:0",
       "row_bcast:15 row_mask:0xa bank_mask:0xf", "row_bcast:31 row_mask:0xc bank_mask:0xf"]

R0 = 32
def router_loads():
    o = ["s_lshl_b32 s%d, s2, 13" % S_T2, "s_lshl_b32 s%d, s%d, 11" % (S_T3, S_W), "s_add_u32 s%d, s%d, s%d" % (S_T2, S_T2, S_T3)]
    o.append(("buffer_load_dwordx4 %s, v%d, %s, s%d offen" % (vr(R0, 4), V_L16, sr(SRD_X, 4), S_T2), "rt"))
    o.append(("buffer_load_dwordx4 %s, v%d, %s, s%d offen offset:1024" % (vr(R0 + 4, 4), V_L16, sr(SRD_X, 4), S_T2), "rt"))
    o.append(("global_load_dwordx4 %s, v%d, %s" % (vr(R0 + 8, 4), V_L16, sr(S_PR, 2)), "rt"))
    o.append(("global_load_dwordx4 %s, v%d, %s" % (vr(R0 + 12, 4), V_L16, sr(S_PG, 2)), "rt"))
    return o
def router_calc():
    o = [("WAITVM", "rt")]
    a = R0 + 16
    for i in range(4):
        for wv in range(2):
            for row in range(2):
                d = a + wv * 2 + row
                o.append("v_dot2_f32_bf16 v%d, v%d, v%d, %s" % (d, R0 + 4 * row + i, R0 + 8 + 4 * wv + i, "v%d" % d if i else "0"))
    for m in DPP:
        for q in range(4): o.append("v_add_f32_dpp v%d, v%d, v%d %s" % (a + q, a + q, a + q, m))
    o += ["s_lshl_b32 s%d, s2, 3" % S_T4, "s_lshl_b32 s%d, s%d, 1" % (S_T5, S_W), "s_add_u32 s%d, s%d, s%d" % (S_T4, S_T4, S_T5),
          "s_sub_u32 s%d, 2047, s%d" % (S_T4, S_T4), "s_sub_u32 s%d, s%d, 1" % (S_T5, S_T4)]
    for row in range(2):
        t = a + 4 + row
        o += ["v_ashrrev_i32 v%d, 31, v%d" % (t, a + row), "v_or_b32 v%d, 0x80000000, v%d" % (t, t), "v_xor_b32 v%d, v%d, v%d" % (a + row, a + row, t),
              "v_and_b32 v%d, 0xfffff800, v%d" % (a + row, a + row), "v_or_b32 v%d, s%d, v%d" % (a + row, S_T4 + row, a + row)]
    for row in range(2): o.append("v_mul_f32 v%d, %s, v%d" % (a + 2 + row, f32hex(-LOG2E), a + 2 + row))
    for row in range(2): o.append("v_exp_f32 v%d, v%d" % (a + 2 + row, a + 2 + row))
    for row in range(2): o.append("v_add_f32 v%d, 1.0, v%d" % (a + 2 + row, a + 2 + row))
    for row in range(2): o.append("v_rcp_f32 v%d, v%d" % (a + 2 + row, a + 2 + row))
    o.append("s_nop 0")
    for row in range(2): o.append("v_or_b32 v%d, 1, v%d" % (a + 2 + row, a + 2 + row))
    return o
def router_store():
    a = R0 + 16
    return ["s_lshl_b32 s%d, s2, 5" % S_T2, "s_lshl_b32 s%d, s%d, 3" % (S_T3, S_W), "s_add_u32 s%d, s%d, s%d" % (S_T2, S_T2, S_T3),
            "s_add_u32 s%d, s%d, 0x%x" % (S_T3, S_T2, GATE_OFF), "s_add_u32 s%d, s%d, 0x%x" % (S_T2, S_T2, RKEY_OFF),
            "s_lshl_b64 exec, 1, 63",
            "buffer_store_dwordx2 %s, off, %s, s%d sc1" % (vr(a, 2), sr(SRD_WS, 4), S_T2),
            "buffer_store_dwordx2 %s, off, %s, s%d sc1" % (vr(a + 2, 2), sr(SRD_WS, 4), S_T3),
            "s_mov_b64 exec, -1"]

def aux_ptrs():
    return ["s_load_dwordx2 %s, s[0:1], 40" % sr(SRD_WO, 2), "s_load_dwordx2 %s, s[0:1], 64" % sr(SRD_G, 2),
            "s_load_dwordx2 %s, s[0:1], 72" % sr(SRD_U, 2), "s_load_dwordx2 %s, s[0:1], 80" % sr(SRD_D, 2)]
V_KEY = 128
V_MW = 160
S_A0, S_A1, S_A2, S_A3 = 76, 77, 78, 79
def aux_loads():
    o1 = srdl(SRD_WO, 4 << 20) + srdl(SRD_G, 512 * 1792 * 2) + srdl(SRD_U, 512 * 1792 * 2)
    o = []
    o += ["s_lshr_b32 s%d, s2, 6" % S_A2, "s_lshl_b32 s%d, s%d, 3" % (S_A2, S_A2), "s_and_b32 s%d, s2, 7" % S_A3, "s_add_u32 s%d, s%d, s%d" % (S_A2, S_A2, S_A3),
          "s_lshl_b32 s%d, s%d, 3" % (S_A2, S_A2), "s_bfe_u32 s%d, s2, 0x30003" % S_A3, "s_add_u32 s%d, s%d, s%d" % (S_A2, S_A2, S_A3),
          "s_lshl_b32 s%d, s%d, 4" % (S_I1, S_A2),
          "v_mul_u32_u24 v21, 3584, v%d" % V_LANE,
          "s_mul_i32 s%d, s%d, %d" % (S_A2, S_W, 128 * 3584), "s_add_u32 s%d, s%d, s%d" % (S_A2, S_A2, S_I1),
          "s_add_u32 s%d, s%d, %d" % (S_A3, S_A2, 64 * 3584)]
    for mi, sd in enumerate((SRD_G, SRD_U)):
        for n in range(2):
            o.append(("buffer_load_dwordx4 %s, v21, %s, s%d offen" % (vr(V_MW + 8 * mi + 4 * n, 4), sr(sd, 4), S_A2 + n), "aux"))
    return o1, o
V_WDT = 22
def wd_loads(t=20, u=19):
    o = srdl(SRD_D, 512 * 1792 * 2)
    F0, F1 = S_A0, S_A1
    o += ["v_lshlrev_b32 v%d, 11, v%d" % (t, V_LANE), "v_mov_b32 v%d, 0x%x" % (u, OOB), "v_cmp_gt_u32 vcc, 56, v%d" % V_LANE,
          "s_lshr_b32 s%d, s2, 6" % F0, "s_lshl_b32 s%d, s%d, 2" % (F0, F0), "s_add_u32 s%d, s%d, s%d" % (F0, F0, S_W),
          "s_mul_i32 s%d, s%d, %d" % (F0, F0, 112 * 1024), "s_and_b32 s%d, s2, 7" % F1, "s_lshl_b32 s%d, s%d, 7" % (F1, F1),
          "s_add_u32 s%d, s%d, s%d" % (F0, F0, F1), "s_bfe_u32 s%d, s2, 0x30003" % F1, "s_lshl_b32 s%d, s%d, 4" % (F1, F1),
          "s_add_u32 s%d, s%d, s%d" % (F0, F0, F1),
          "v_cndmask_b32 v%d, v%d, v%d, vcc" % (t, u, t)]
    for c in range(2):
        o.append(("buffer_load_dwordx4 %s, v%d, %s, s%d offen offset:%d" % (vr(V_WDT + 4 * c, 4), t, sr(SRD_D, 4), F0, 1024 * c), "wdn"))
    return o
def wo_touch(jk, t=20, u=19):
    F0, F1 = S_A0, S_A1
    return ["v_bfe_u32 v%d, v%d, 3, 2" % (t, V_LANE), "v_lshlrev_b32 v%d, 17, v%d" % (t, t), "v_bfe_u32 v%d, v%d, 1, 2" % (u, V_LANE),
            "v_lshl_add_u32 v%d, v%d, 10, v%d" % (t, u, t), "v_and_b32 v%d, 1, v%d" % (u, V_LANE), "v_lshl_add_u32 v%d, v%d, 7, v%d" % (t, u, t),
            "s_lshr_b32 s%d, s%d, 2" % (F0, S_H), "s_lshl_b32 s%d, s%d, 19" % (F0, F0), "s_lshl_b32 s%d, s%d, 12" % (F1, S_GS), "s_add_u32 s%d, s%d, s%d" % (F0, F0, F1),
            "s_and_b32 s%d, s%d, 3" % (F1, S_H), "s_lshl_b32 s%d, s%d, 8" % (F1, F1), "s_add_u32 s%d, s%d, s%d" % (F0, F0, F1),
            ("buffer_load_dword v%d, v%d, %s, s%d offen" % (jk, t, sr(SRD_WO, 4), F0), "pf")]
def mw_write():
    o = ["s_lshl_b32 s%d, s%d, 11" % (S_T0, S_W), "s_add_u32 s%d, s%d, 0x%x" % (S_T0, S_T0, L_MW), "v_add_u32 v20, s%d, v%d" % (S_T0, V_L16)]
    for mi in range(2):
        for n in range(2):
            o.append("ds_write_b128 v20, %s offset:%d" % (vr(V_MW + 8 * mi + 4 * n, 4), 8192 * mi + 1024 * n))
    return o

def key_loads(tag="key"):
    o = []
    for hf in range(2):
        o.append("s_mov_b32 s%d, 0x%x" % (S_T4, RKEY_OFF + 4096 * hf))
        for n in range(4):
            o.append(("buffer_load_dwordx4 %s, v%d, %s, s%d offen offset:%d sc1" % (vr(V_KEY + 16 * hf + 4 * n, 4), V_L16, sr(SRD_WS, 4), S_T4, 1024 * n), tag))
    return o
def key_min(t):
    o = ["v_min3_u32 v%d, v%d, v%d, v%d" % (t, V_KEY, V_KEY + 1, V_KEY + 2)]
    for i in range(3, 31, 2): o.append("v_min3_u32 v%d, v%d, v%d, v%d" % (t, t, V_KEY + i, V_KEY + i + 1))
    o.append("v_min_u32 v%d, v%d, v%d" % (t, t, V_KEY + 31))
    return o
def top2(t, s0, s1):
    o = ["v_max_u32 v%d, v%d, v%d" % (t, V_KEY, V_KEY + 1), "v_min_u32 v%d, v%d, v%d" % (t + 1, V_KEY, V_KEY + 1)]
    for i in range(2, 32):
        o.append("v_med3_u32 v%d, v%d, v%d, v%d" % (t + 1, t, t + 1, V_KEY + i))
        o.append("v_max_u32 v%d, v%d, v%d" % (t, t, V_KEY + i))
    o.append("v_mov_b32 v%d, v%d" % (t + 2, t))
    for m in DPP: o += ["s_nop 1", "v_max_u32_dpp v%d, v%d, v%d %s" % (t + 2, t + 2, t + 2, m)]
    o += ["s_nop 0", "v_readlane_b32 s%d, v%d, 63" % (s0, t + 2), "s_nop 1",
          "v_cmp_eq_u32 vcc, s%d, v%d" % (s0, t), "s_nop 1", "v_cndmask_b32 v%d, v%d, v%d, vcc" % (t + 2, t, t + 1)]
    for m in DPP: o += ["s_nop 1", "v_max_u32_dpp v%d, v%d, v%d %s" % (t + 2, t + 2, t + 2, m)]
    o += ["s_nop 0", "v_readlane_b32 s%d, v%d, 63" % (s1, t + 2), "s_nop 0"]
    return o

def xsel_dma(A):
    A("s_lshl_b32 s%d, s%d, 11" % (S_T2, S_W))
    for i in range(2):
        A("s_andn2_b32 s%d, 0x7ff, s%d" % (S_T3, S_T4 + i))
        A("s_lshl_b32 s%d, s%d, 10" % (S_T3, S_T3))
        A("s_add_u32 m0, s%d, %d" % (S_T2, L_XS + 1024 * i))
        A("s_nop 0")
        A(("buffer_load_dwordx4 v%d, %s, s%d offen lds" % (V_L16, sr(SRD_X, 4), S_T3), "xs"))

def mod(A, T, F):
    A("v_lshrrev_b32 v%d, 4, v%d" % (T, V_LANE))
    A("v_bfe_u32 v%d, v%d, 2, 2" % (T + 1, V_LANE))
    A("v_lshl_add_u32 v%d, v%d, 3, v%d" % (T + 1, T, T + 1))
    A("v_lshlrev_b32 v%d, 4, v%d" % (T + 1, T + 1))
    A("v_and_b32 v%d, 1, v%d" % (T + 2, V_LANE))
    A("v_lshl_add_u32 v%d, v%d, 3, v%d" % (T + 1, T + 2, T + 1))
    A("v_bfe_u32 v%d, v%d, 1, 1" % (T + 3, V_LANE))
    A("v_lshl_add_u32 v%d, v%d, 13, v%d" % (T + 1, T + 3, T + 1))
    A("v_add_u32 v%d, 0x%x, v%d" % (T + 1, L_MW, T + 1))
    for ks in range(16):
        for q in range(2):
            A("ds_read_b64_tr_b16 %s, v%d offset:%d" % (vr(F + 4 * ks + 2 * q, 2), T + 1, 512 * ks + 64 * q))
    A("v_lshlrev_b32 v%d, 4, v%d" % (T + 3, T))
    A("v_lshl_add_u32 v%d, v%d, 10, v%d" % (T + 3, T + 2, T + 3))
    A("s_lshl_b32 s%d, s%d, 11" % (S_T2, S_W))
    A("s_add_u32 s%d, s%d, 0x%x" % (S_T2, S_T2, L_XS))
    A("v_add_u32 v%d, s%d, v%d" % (T + 3, S_T2, T + 3))
    A("v_mov_b32 v%d, s%d" % (T + 4, S_T4))
    A("v_mov_b32 v%d, s%d" % (T + 5, S_T5))
    A("v_cmp_eq_u32 vcc, 1, v%d" % (T + 2))
    A("s_andn2_b32 s%d, 0x7ff, s%d" % (S_I0, S_T4))
    A("s_nop 0")
    A("v_cndmask_b32 v%d, v%d, v%d, vcc" % (T + 4, T + 4, T + 5))
    A("v_ashrrev_i32 v%d, 31, v%d" % (T + 5, T + 4))
    A("v_not_b32 v%d, v%d" % (T + 5, T + 5))
    A("v_or_b32 v%d, 0x80000000, v%d" % (T + 5, T + 5))
    A("v_xor_b32 v%d, v%d, v%d" % (T + 4, T + 4, T + 5))
    A("v_mul_f32 v%d, %s, v%d" % (T + 4, f32hex(-LOG2E), T + 4))
    A("v_exp_f32 v%d, v%d" % (T + 4, T + 4))
    A(("WAITVM", "xs"))
    A("v_add_f32 v%d, 1.0, v%d" % (T + 4, T + 4))
    for ks in range(16):
        A("ds_read_b128 %s, v%d offset:%d" % (vr(F + 64 + 4 * ks, 4), T + 3, 64 * ks))
    A("v_rcp_f32 v%d, v%d" % (T + 4, T + 4))
    D = T + 8
    for ks in range(16):
        if ks % 4 == 0: A("s_waitcnt lgkmcnt(%d)" % (12 - ks))
        d = vr(D + 4 * (ks & 1), 4)
        A("%s %s, %s, %s, %s" % (MF, d, vr(F + 4 * ks, 4), vr(F + 64 + 4 * ks, 4), d if ks > 1 else "0"))
    A("s_nop 7")
    for r in range(4): A("v_add_f32 v%d, v%d, v%d" % (D + r, D + r, D + 4 + r))
    for r in range(4): A("v_mov_b32 v%d, v%d" % (D + 4 + r, D + r))
    A("s_nop 1")
    for r in range(4): A("v_permlane32_swap_b32 v%d, v%d" % (D + r, D + 4 + r))
    G = F + 16
    for r in range(4): A("v_mul_f32 v%d, %s, v%d" % (G + r, f32hex(-LOG2E), D + r))
    for r in range(4): A("v_exp_f32 v%d, v%d" % (G + r, G + r))
    for r in range(4): A("v_mul_f32 v%d, v%d, v%d" % (D + r, D + r, D + 4 + r))
    for r in range(4): A("v_add_f32 v%d, 1.0, v%d" % (G + r, G + r))
    for r in range(4): A("v_rcp_f32 v%d, v%d" % (G + r, G + r))
    for r in range(4): A("v_mul_f32 v%d, v%d, v%d" % (D + r, D + r, T + 4))
    for r in range(4): A("v_mul_f32 v%d, v%d, v%d" % (D + r, D + r, G + r))
    for r in range(4): A("v_or_b32 v%d, 1, v%d" % (D + r, D + r))
    A("v_lshlrev_b32 v%d, 4, v%d" % (T, T))
    A("v_lshl_add_u32 v%d, v%d, 5, v%d" % (T, T + 2, T))
    A("s_lshl_b32 s%d, s%d, 2" % (S_T2, S_I1))
    A("s_add_u32 s%d, s%d, 0x%x" % (S_T2, S_T2, HB_OFF))
    A("s_cmp_ge_u32 s%d, %d" % (S_I1, 3584))
    A("s_cselect_b32 s%d, 1, s%d" % (S_T3, S_W))
    A("s_cmp_lg_u32 s%d, 0" % S_T3)
    A("s_cbranch_scc1 mod_nost")
    A(("RAW", ["s_mov_b64 exec, 0x30003", "buffer_store_dwordx4 %s, v%d, %s, s%d offen sc1" % (vr(D, 4), T, sr(SRD_WS, 4), S_T2), "s_mov_b64 exec, -1"]))
    A.label("mod_nost")
    A("s_andn2_b32 s%d, 0x7ff, s%d" % (S_I1, S_T5))

import att
ACC_ = (16, 192)
WRING = (("v", 96), ("v", 112), ("a", 64), ("a", 80))
CFR = {(1, 0): 160, (2, 0): 192, (3, 0): 224, (1, 1): 96, (2, 1): 128, (3, 1): 0}
GROUPS = [(hx, grp, ks, hf) for hx, grp in ((0, 0), (0, 1), (1, 0), (2, 0), (3, 0)) for ks in range(4) for hf in range(2)] + \
         [(hx, 1, ks, hf) for hf in range(2) for hx in (1, 2, 3) for ks in range(4)]
def wreg(n, e):
    t, b = WRING[n & 3]
    return "%s[%d:%d]" % (t, b + 4 * e, b + 4 * e + 3)
def acc(grp, qt, f): return ACC_[grp] + (qt * 8 + f) * 4
WA = (V_LW, V_RD, V_DM, 0)
WBASE = (0x20000, 0, 0, 0x10000)
def w_rd(n):
    if n >= 64: return []
    hx, grp, ks, hf = GROUPS[n]
    o = []
    if n == 0: o += ["v_xor_b32 v%d, %d, v%d" % (WA[e], 32 * e, V_LW) for e in range(1, 4)]
    elif WBASE[hx] != WBASE[GROUPS[n - 1][0]]:
        o += ["v_xor_b32 v%d, 0x%x, v%d" % (WA[e], WBASE[hx] ^ WBASE[GROUPS[n - 1][0]], WA[e]) for e in range(4)]
    off = (0x8000 if hx == 2 else 0) + ks * 8192 + hf * 4096
    t, b = WRING[n & 3]
    for e in range(4):
        for q in range(2):
            o.append(("ds_read_b64_tr_b16 %s[%d:%d], v%d offset:%d" % (t, b + 4 * e + 2 * q, b + 4 * e + 2 * q + 1, WA[e], off + 512 * q), ("wr", n)))
    return o
def g_mf(n):
    hx, grp, ks, hf = GROUPS[n]
    o = []
    for e in range(4):
        for qt in range(2):
            d = vr(acc(grp, qt, 4 * hf + e), 4)
            c = vr((FRS, FRL)[grp] + 8 * ks + 4 * qt, 4) if hx == 0 else ar(CFR[hx, grp] + 8 * ks + 4 * qt, 4)
            o.append("%s %s, %s, %s, %s" % (MF, d, wreg(n, e), c, "0" if hx == 0 and ks == 0 else d))
    return o
def c_loads(grp, sb):
    o = []
    for hx in range(1, 4):
        for ks in range(4):
            for qt in range(2):
                o.append(("buffer_load_dwordx4 %s, v%d, %s, s%d offen offset:%d sc1" % (ar(CFR[hx, grp] + 8 * ks + 4 * qt, 4), V_L16 if ks < 2 else V_L4K,
                          sr(SRD_WS, 4), sb + hx, (ks & 1) * 2048 + qt * 1024), ("c", hx, grp, ks)))
    return o
def fin_last():
    return w_rd(0) + w_rd(1) + c_loads(0, S_T0)
def part_st(p, t):
    grp, qt, hf = p >> 2, (p >> 1) & 1, p & 1
    o = ["s_add_u32 s%d, s%d, %d" % (S_X1, S_PBW, p * 2048)]
    for q in range(2):
        for e in (2 * q, 2 * q + 1):
            for k in range(2):
                o.append("v_cvt_pk_bf16_f32 v%d, v%d, v%d" % (t + 2 * e + k, acc(grp, qt, 4 * hf + e) + 2 * k, acc(grp, qt, 4 * hf + e) + 2 * k + 1))
        o.append(("buffer_store_dwordx4 %s, v%d, %s, s%d offen offset:%d sc1" % (vr(t + 4 * q, 4), V_L16, sr(SRD_WS, 4), S_X1, 1024 * q), "ps"))
    return o
def xswap(r): return ["v_permlane16_swap_b32 v%d, v%d" % (r + a_, r + a_ + 2) for a_ in (0, 1, 4, 5)]
def xpos(e): return (e & 1) * 4 + (e >> 1) * 2

def tail_setup():
    o = ["s_lshr_b32 s%d, s2, 3" % S_PBW, "s_lshl_b32 s%d, s%d, 2" % (S_PBW, S_PBW), "s_add_u32 s%d, s%d, s%d" % (S_PBW, S_PBW, S_W),
         "s_lshl_b32 s%d, s%d, 17" % (S_PBW, S_PBW), "s_add_u32 s%d, s%d, 0x%x" % (S_PBW, S_PBW, PB_OFF),
         "s_and_b32 s%d, s2, 7" % S_X0,
         "s_lshl_b32 s%d, s%d, 11" % (S_X1, S_X0), "s_add_u32 s%d, s%d, s%d" % (S_PBR, S_PBW, S_X1),
         "s_lshl_b32 s%d, s%d, 14" % (S_X1, S_X0), "s_add_u32 s%d, s%d, s%d" % (S_PBW, S_PBW, S_X1),
         "s_cmp_ge_u32 s%d, 4" % S_X0, "s_cselect_b32 s%d, s%d, s%d" % (S_ROW, S_GL, S_GS), "s_lshl_b32 s%d, s%d, 1" % (S_ROW, S_ROW),
         "s_bfe_u32 s%d, s2, 0x10001" % S_X1, "s_add_u32 s%d, s%d, s%d" % (S_ROW, S_ROW, S_X1), "s_lshl_b32 s%d, s%d, 4" % (S_ROW, S_ROW),
         "s_and_b32 s%d, s%d, 3" % (S_X1, S_H), "s_lshl_b32 s%d, s%d, 1" % (S_X1, S_X1), "s_and_b32 s%d, s2, 1" % S_X0,
         "s_add_u32 s%d, s%d, s%d" % (S_X1, S_X1, S_X0), "s_lshl_b32 s%d, s%d, 7" % (S_CB64, S_X1),
         "s_lshl_b32 s%d, s%d, 10" % (S_XO, S_ROW), "s_add_u32 s%d, s%d, s%d" % (S_XO, S_XO, S_CB64)]
    return o + srdl(SRD_OUT, 2 << 20)
S_CB64 = 42
HV, WU, YV = 128, 144, 160
def h_loads():
    return [("buffer_load_dwordx2 %s, v%d, %s, s%d offen offset:%d sc1" % (vr(HV + 2 * i, 2), V_T + 3, sr(SRD_WS, 4), S_T4, 32 * i), "h") for i in range(2)]
def h_min(t):
    return ["v_min3_u32 v%d, v%d, v%d, v%d" % (t, HV, HV + 1, HV + 2), "v_min_u32 v%d, v%d, v%d" % (t, t, HV + 3)]
XV, GV, UV, VA, XU = 128, 136, 16, 137, 140
def f_loads():
    o = [("buffer_load_dwordx4 %s, v%d, %s, s%d offen offset:%d" % (vr(XV + 4 * q, 4), VA, sr(SRD_X, 4), S_XO, 16 * q), "fx") for q in range(2)]
    return o + f_loads2()
def f_loads2():
    o = [("buffer_load_dword v%d, v%d, %s, s%d offen sc1" % (GV, VA + 1, sr(SRD_WS, 4), S_T4), "fx")]
    for rg in range(4):
        o.append("s_add_u32 s%d, s%d, %d" % (S_X0, S_T5, 4096 * rg))
        o += [("buffer_load_dwordx4 %s, v%d, %s, s%d offen offset:%d sc1" % (vr(UV + 16 * rg + 4 * q, 4), VA + 2, sr(SRD_WS, 4), S_X0, 32 * q), "fx") for q in range(4)]
    o.append(att.ld_flags("fx"))
    return o
def f_chk(t):
    o = ["v_min3_u32 v%d, v%d, v%d, v%d" % (t, UV, UV + 1, UV + 2)]
    for i in range(3, 63, 2): o.append("v_min3_u32 v%d, v%d, v%d, v%d" % (t, t, UV + i, UV + i + 1))
    o += ["v_min_u32 v%d, v%d, v%d" % (t, t, UV + 63), "v_cndmask_b32 v%d, 1, v%d, %s" % (t, t, sr(S_T0, 2)),
          "v_lshrrev_b32 v%d, 1, v%d" % (att.V_FL, att.V_FL), "v_cndmask_b32 v%d, 1, v%d, %s" % (att.V_FL, att.V_FL, sr(S_BAD, 2)),
          "v_min3_u32 v%d, v%d, v%d, v%d" % (t, t, GV, att.V_FL)]
    return o

def p3(k, rest, chk):
    A = k.A
    T = V_T
    spins = []
    qw = Q(cap=2)
    qa = Q(att.epi_list("L"), first=3)
    qv = Q(rest)
    qb = Q()
    def run(n0, n1, post=None, s1=None, extra=None, drain=(), vmgap=1):
        post = post or {}; s1 = s1 or {}
        for n in range(n0, n1):
            hx, grp, ks, hf = GROUPS[n]
            qw.add(w_rd(n + 2))
            pre = [("WAITLG", ("wr", n))]
            if hx and (hf == 0): pre.append(("WAITVM", ("c", hx, grp, ks)))
            o = 8 * (n - n0)
            lf = step(A, g_mf(n), [qw, qa, qv, qb], pre={0: pre}, post={g - o: v for g, v in post.items() if o <= g < o + 8},
                      s1={g - o: v for g, v in s1.items() if o <= g < o + 8}, drain=[qw] + (list(drain) if n == n1 - 1 else []), vmgap=vmgap)
            qa.first = 0
            if lf: print("; group", n, "left", lf, file=sys.stderr)
    run(0, 8, drain=[qa])
    A("s_nop 0")
    step(A, att.epi_chk_mf("L"), [qv])
    k.stamp("t_os")
    ck = att.epi_chk()
    post = {8: ck[:2], 9: [ck[2]], 10: [ck[3], "v_mov_b32 v%d, s%d" % (T + 1, S_X1)],
            15: ["v_mov_b32 v%d, s%d" % (T, S_X0), "v_mov_b32 v%d, 0x%x" % (T + 2, L_SCR)],
            16: [("ds_write_b32 v%d, v%d" % (T + 1, T), "dec")],
            21: [("ds_read_b128 %s, v%d" % (vr(T + 4, 4), T + 2), "dec2")],
            28: ["v_or3_b32 v%d, v%d, v%d, v%d" % (T, T + 4, T + 5, T + 6), "v_or_b32 v%d, v%d, v%d" % (T, T, T + 7)],
            30: ["v_readfirstlane_b32 s%d, v%d" % (S_X0, T)]}
    s1 = {1: ["s_lshl_b32 s%d, s%d, 2" % (S_X1, S_W)], 2: ["s_add_u32 s%d, s%d, 0x%x" % (S_X1, S_X1, L_SCR)],
          12: [att.BADOR], 13: ["s_cmp_lg_u64 %s, 0" % sr(S_BAD, 2)],
          14: ["s_mov_b32 s%d, 1" % S_X0 if k.opts.get("forceredo") else "s_cselect_b32 s%d, 1, 0" % S_X0],
          19: [("WAITVM", "wc")], 20: [("WAITLG", "dec")], 21: ["s_barrier"], 27: [("WAITLG", "dec2")],
          32: ["s_cmp_gt_u32 s%d, s%d" % (S_X0, S_REDO)], 33: ["s_cbranch_scc1 att_redo"]}
    run(8, 13, post=post, s1=s1, drain=[qv])
    qv.add(att.wo_dma(3, 0x10000, HV + 4, "wd"))
    qv.add(["v_min_u32 v%d, 55, v%d" % (T + 3, V_LANE), "v_and_b32 v%d, 3, v%d" % (T + 2, T + 3), "v_lshrrev_b32 v%d, 2, v%d" % (T + 3, T + 3),
            "v_lshlrev_b32 v%d, 6, v%d" % (T + 3, T + 3), "v_lshl_add_u32 v%d, v%d, 3, v%d" % (T + 3, T + 2, T + 3),
            "s_lshr_b32 s%d, s2, 6" % S_T4, "s_lshl_b32 s%d, s%d, 2" % (S_T4, S_T4), "s_add_u32 s%d, s%d, s%d" % (S_T4, S_T4, S_W),
            "s_mul_i32 s%d, s%d, %d" % (S_T4, S_T4, 112 * 8), "s_add_u32 s%d, s%d, 0x%x" % (S_T4, S_T4, HB_OFF)] + h_loads())
    fl = att.flag_st(2)
    pos = k.opts.get("lflag", 20)
    run(13, 16, post={pos: [fl[0]], pos + 2: [fl[1:]]}, s1={pos + 2: [("WAITVM", "cst")]}, drain=[qv])
    A("s_cmp_lg_u32 s%d, 0" % S_SOK)
    A("s_cbranch_scc1 s_slow")
    A.label("s_slow_ok")
    A.alt = list(A.vm) + [x[1] for x in c_loads(0, S_CS)]
    k.stamp("t_ol")
    for c in range(8):
        qb.add(["v_lshlrev_b32 v%d, 16, v%d" % (WU + 2 * c, V_WD2 + c), "v_and_b32 v%d, 0xffff0000, v%d" % (WU + 2 * c + 1, V_WD2 + c)])
    run(16, 18, drain=[qb])
    lchk = ["v_cmp_gt_u32 vcc, 2, v%d" % att.V_FL, "s_nop 0", "s_and_b32 vcc_lo, vcc_lo, s%d" % S_M4, "s_mov_b32 vcc_hi, 0"]
    pc = k.opts.get("lchk", 8)
    qb.add([("WAITVM", "h")] + h_min(T) + [("RAW", chk("h_spin", T))])
    for i in range(2):
        for tok in range(2):
            for e in range(8):
                qb.add(["%s v%d, v%d, v%d" % ("v_fmac_f32" if i else "v_mul_f32", YV + 8 * tok + e, HV + 2 * tok + i, WU + 8 * i + e)])
    qb.add(["s_lshl_b32 s%d, s%d, 6" % (S_T4, S_W), "s_add_u32 s%d, s%d, 0x%x" % (S_T4, S_T4, L_SCR + 64), "v_lshrrev_b32 v%d, 4, v%d" % (HV, V_LANE),
            "v_lshlrev_b32 v%d, 4, v%d" % (HV, HV), "v_add_u32 v%d, s%d, v%d" % (HV, S_T4, HV)])
    for sw, n in (("v_permlane32_swap_b32", 8), ("v_permlane16_swap_b32", 4)):
        for i in range(n): qb.add(["%s v%d, v%d" % (sw, YV + i, YV + n + i)])
        for i in range(n): qb.add(["v_add_f32 v%d, v%d, v%d" % (YV + i, YV + i, YV + n + i)])
    for m in DPP[:4]:
        for q in range(4): qb.add(["v_add_f32_dpp v%d, v%d, v%d %s" % (YV + q, YV + q, YV + q, m)])
    qb.add(["s_mov_b32 s%d, 0x80008000" % S_T4, "s_mov_b32 s%d, 0x80008000" % S_T5,
            ["s_mov_b64 exec, %s" % sr(S_T4, 2), ("ds_write_b128 v%d, %s" % (HV, vr(YV, 4)), "yw"), "s_mov_b64 exec, -1"]])
    pl = k.opts.get("lpoll", 24)
    run(18, 24, post={pl: [att.ld_flags()]})
    def l_go():
        qv.add(c_loads(1, S_CL))
        return [("RAW", lchk[:3] + ["s_cbranch_scc1 l_spin", "l_spin_ok:"])]
    run(24, 30, s1={pc: [("WAITVM", "fl")], pc + 1: l_go}, drain=[qb])
    A(("WAITVM", "wd", "lgkmcnt(0)"))
    A.lg = []
    A("s_barrier")
    k.stamp("t_b2")
    o = ["v_and_b32 v%d, 3, v%d" % (HV, V_LANE), "v_lshlrev_b32 v%d, 4, v%d" % (HV + 1, HV), "v_add_u32 v%d, 0x%x, v%d" % (HV + 2, L_SCR + 64, HV + 1)]
    o += [("ds_read_b128 %s, v%d offset:%d" % (vr(YV + 4 * i, 4), HV + 2, 64 * i), "yr") for i in range(4)]
    o += ["v_lshrrev_b32 v%d, 1, v%d" % (HV, HV), "v_mul_u32_u24 v%d, %d, v%d" % (HV, 2048 - 32, HV), "v_add_u32 v%d, v%d, v%d" % (HV, HV, HV + 1),
          "s_lshr_b32 s%d, s2, 6" % S_T4, "s_lshl_b32 s%d, s%d, 4" % (S_T4, S_T4), "s_and_b32 s%d, s2, 7" % S_T5, "s_add_u32 s%d, s%d, s%d" % (S_T4, S_T4, S_T5),
          "s_lshl_b32 s%d, s%d, 3" % (S_T4, S_T4), "s_bfe_u32 s%d, s2, 0x30003" % S_T5, "s_add_u32 s%d, s%d, s%d" % (S_T4, S_T4, S_T5),
          "s_lshl_b32 s%d, s%d, 5" % (S_T4, S_T4), "s_add_u32 s%d, s%d, 0x%x" % (S_T4, S_T4, YB_OFF),
          ["s_cmp_lg_u32 s%d, 0" % S_W, "s_cselect_b32 s%d, s%d, s%d" % (S_T4, S_LIM, S_T4)],
          ("WAITLG", "yr")]
    for a_, b_ in ((0, 4), (8, 12), (0, 8)):
        o += ["v_add_f32 v%d, v%d, v%d" % (YV + a_ + i, YV + a_ + i, YV + b_ + i) for i in range(4)]
    o += ["v_or_b32 v%d, 1, v%d" % (YV + i, YV + i) for i in range(4)]
    o.append(["s_mov_b64 exec, 15", ("buffer_store_dwordx4 %s, v%d, %s, s%d offen sc1" % (vr(YV, 4), HV, sr(SRD_WS, 4), S_T4), "ys"), "s_mov_b64 exec, -1"])
    qb.add(o)
    run(30, 40, drain=[qv, qb])
    k.stamp("t_s")
    PT = (160, 168, 176, 184)
    qa.first = 8
    for p in range(4): qa.add(part_st(p, PT[p]))
    o = ["v_and_b32 v%d, 15, v%d" % (VA + 1, V_LANE), "v_lshrrev_b32 v%d, 4, v%d" % (VA + 2, V_LANE), "v_lshlrev_b32 v%d, 10, v%d" % (VA, VA + 1),
         "v_lshl_add_u32 v%d, v%d, 5, v%d" % (VA, VA + 2, VA), "v_and_b32 v%d, 16, v%d" % (T, V_LANE), "v_lshrrev_b32 v%d, 1, v%d" % (VA + 2, VA + 2),
         "v_lshl_add_u32 v%d, v%d, 7, v%d" % (VA + 2, VA + 2, T), "v_add_u32 v%d, s%d, v%d" % (VA + 1, S_ROW, VA + 1),
         "s_and_b32 s%d, s%d, 3" % (S_BAD + 1, S_H), "s_lshl_b32 s%d, 0x11111111, s%d" % (S_BAD, S_BAD + 1), "s_mov_b32 s%d, 0" % (S_BAD + 1),
         "v_cmp_eq_u32 %s, s%d, v%d" % (sr(S_T0, 2), S_I0, VA + 1), "v_cmp_eq_u32 %s, s%d, v%d" % (sr(S_T2, 2), S_I1, VA + 1),
         "v_add_u32 v%d, 0x800, v%d" % (T, VA + 2), "v_mov_b32 v%d, 0x%x" % (T + 1, OOB), "v_lshlrev_b32 v%d, 2, v%d" % (VA + 1, VA + 1),
         "v_cndmask_b32 v%d, v%d, v%d, %s" % (VA + 2, T + 1, VA + 2, sr(S_T0, 2)), "v_cndmask_b32 v%d, v%d, v%d, %s" % (VA + 2, VA + 2, T, sr(S_T2, 2)),
         "s_or_b64 %s, %s, %s" % (sr(S_T0, 2), sr(S_T0, 2), sr(S_T2, 2)), "s_mov_b32 s%d, 0x%x" % (S_T4, GATE_OFF),
         "s_lshl_b32 s%d, s%d, 1" % (S_T5, S_CB64), "s_add_u32 s%d, s%d, 0x%x" % (S_T5, S_T5, YB_OFF)]
    qb.add(o)
    qa.add(f_loads())
    run(40, 41)
    run(41, 44, drain=[qb])
    run(44, 52, drain=[qa])
    qa.first = 8
    for p in (4, 6): qa.add(part_st(p, PT[p - 4]))
    B = UV
    o = [("WAITVM", "fx")] + f_chk(T) + [("RAW", chk("f_spin", T))]
    o += xswap(XV) + ["s_nop 0"]
    for i in range(8):
        xs = XV + xpos(i >> 1) + (i & 1)
        o += ["v_lshlrev_b32 v%d, 16, v%d" % (XU + 2 * i, xs), "v_and_b32 v%d, 0xffff0000, v%d" % (XU + 2 * i + 1, xs)]
    for a_, b_ in ((UV, UV + 16), (UV + 32, UV + 48), (UV, UV + 32), (UV, XU)):
        o += ["v_add_f32 v%d, v%d, v%d" % (a_ + i, a_ + i, b_ + i) for i in range(16)]
    qa.add(o)
    run(52, 53)
    run(53, 64, drain=[qa])
    k.stamp("t_mm")
    A("s_nop 5")
    for p in (5, 7): A(part_st(p, PT[p - 4]))
    for src in range(1, 8): A("s_add_u32 s%d, s%d, 0x%x" % (MSK + src, S_PBR, src * 16384))
    A("s_mov_b32 s%d, 0" % S_T3)
    if k.opts.get("fsleep"): A("s_sleep %d" % k.opts["fsleep"])
    R, U, S = 192, 48, 32
    A.label("g_loop")
    for src in range(8):
        for q in range(2):
            A("buffer_load_dwordx4 %s, v%d, %s, s%d offen offset:%d sc1" % (vr(R + 8 * src + 4 * q, 4), V_L16, sr(SRD_WS, 4),
              MSK + src if src else S_PBR, q * 1024))
    for src in range(8):
        A("s_waitcnt vmcnt(%d)" % (14 - 2 * src))
        d = S if src == 0 else U
        for i in range(8):
            A("v_lshlrev_b32 v%d, 16, v%d" % (d + 2 * i, R + 8 * src + i))
            A("v_and_b32 v%d, 0xffff0000, v%d" % (d + 2 * i + 1, R + 8 * src + i))
        if src:
            for i in range(8): A("v_pk_add_f32 %s, %s, %s" % (vr(S + 2 * i, 2), vr(S + 2 * i, 2), vr(U + 2 * i, 2)))
    for i in range(4): A("v_pk_add_f32 %s, %s, %s" % (vr(U + 2 * i, 2), vr(S + 2 * i, 2), vr(S + 8 + 2 * i, 2)))
    for i in range(8): A("v_pk_add_f32 %s, %s, %s neg_lo:[0,1] neg_hi:[0,1]" % (vr(S + 2 * i, 2), vr(S + 2 * i, 2), vr(B + 2 * i, 2)))
    for i in range(2): A("v_pk_add_f32 %s, %s, %s" % (vr(U + 2 * i, 2), vr(U + 2 * i, 2), vr(U + 4 + 2 * i, 2)))
    A("v_pk_add_f32 %s, %s, %s" % (vr(U, 2), vr(U, 2), vr(U + 2, 2)))
    A("s_add_u32 s%d, s%d, 1" % (S_T3, S_T3))
    A("v_cmp_u_f32 vcc, v%d, v%d" % (U, U + 1))
    for i in range(8): A("v_pk_fma_f32 %s, %s, %s, %s op_sel:[0,0,0] op_sel_hi:[1,0,1]" % (vr(S + 2 * i, 2), vr(S + 2 * i, 2), vr(GV, 2), vr(B + 2 * i, 2)))
    A("s_cmp_gt_u32 s%d, %d" % (S_T3, SPIN_MAX // 4))
    A("s_cbranch_scc1 g_done")
    A("s_cmp_lg_u64 vcc, 0")
    A("s_cbranch_scc1 g_loop")
    A.label("g_done")
    for i in range(8): A("v_cvt_pk_bf16_f32 v%d, v%d, v%d" % (U + xpos(i >> 1) + (i & 1), S + 2 * i, S + 2 * i + 1))
    A("s_nop 1")
    A(xswap(U))
    A("s_nop 1")
    for q in range(2):
        A("buffer_store_dwordx4 %s, v%d, %s, s%d offen offset:%d" % (vr(U + 4 * q, 4), VA, sr(SRD_OUT, 4), S_XO, 16 * q))
    A.alt = None
    schk = ["v_cmp_eq_u32 vcc, 0, v%d" % att.V_FL] + lchk[1:]
    return [("s_slow", att.ld_flags(), schk, c_loads(0, S_CS)), ("l_spin", att.ld_flags(), lchk, None),
            ("h_spin", h_loads(), h_min(T) + ["v_cmp_eq_u32 vcc, 0, v%d" % T], None),
            ("f_spin", f_loads2(), f_chk(T) + ["v_cmp_eq_u32 vcc, 0, v%d" % T], None)]
```

```python
import sys
from asmlib import *
from sched import *
from defs import *
import mk2, att
import tail2 as tail
from mk2 import K, prologue, frontend, dump_stamps

class NoTrack:
    def __init__(self, A): self.A = A
    def __enter__(self):
        A = self.A; self.sv = (list(A.vm), A.out, list(A.lg))
    def __exit__(self, *a):
        A = self.A; A.vm, A.out, A.lg = self.sv

def init_cond(A, lab):
    A("s_lshl_b32 s%d, s%d, 2" % (S_T4, S_W))
    A("s_or_b32 s%d, s2, s%d" % (S_T4, S_T4))
    A("s_cmp_gt_u32 s%d, 3" % S_T4)
    A("s_cbranch_scc1 %s" % lab)
def init_zero(A):
    with NoTrack(A):
        init_cond(A, "init_skip")
        for i in range(4): A("v_mov_b32 v%d, 0" % (96 + i))
        A("s_mul_i32 s%d, s2, %d" % (S_T2, ZERO_Q))
        A("s_add_u32 s%d, s%d, 0x%x" % (S_T2, S_T2, MISC_OFF))
        for n in range(ZERO_Q // 1024):
            if n and n % 4 == 0: A("s_add_u32 s%d, s%d, 0x1000" % (S_T2, S_T2))
            A("buffer_store_dwordx4 v[96:99], v%d, %s, s%d offen offset:%d sc1" % (V_L16, sr(SRD_WS, 4), S_T2, 1024 * (n & 3)))
        A.label("init_skip")
def init_flag(A):
    with NoTrack(A):
        init_cond(A, "init_skip2")
        A("v_mov_b32 v100, 1")
        A("s_lshl_b32 s%d, s2, 2" % S_T4)
        A("s_mov_b64 exec, 1")
        A("buffer_store_dword v100, off, %s, s%d sc1" % (sr(SRD_DBG, 4), S_T4))
        A("s_mov_b64 exec, -1")
        A.label("init_skip2")

def spin(A, name, load, vreg, back, after=None):
    with NoTrack(A):
        A.label(name)
        A("s_mov_b32 s%d, 0" % S_T3)
        A.label(name + "_l")
        A("s_sleep 2")
        A(load)
        A("s_add_u32 s%d, s%d, 1" % (S_T3, S_T3))
        A("s_waitcnt vmcnt(0)")
        A(vreg if isinstance(vreg, list) else "v_cmp_eq_u32 vcc, 0, v%d" % vreg)
        A("s_cmp_gt_u32 s%d, %d" % (S_T3, SPIN_MAX))
        A("s_cbranch_scc1 %s_x" % name)
        A("s_cmp_lg_u64 vcc, 0")
        A("s_cbranch_scc1 %s_l" % name)
        A.label(name + "_x")
        if after: A(after)
        A("s_branch %s" % back)

def chk(name, vreg):
    return ["v_cmp_eq_u32 vcc, 0, v%d" % vreg, "s_nop 0", "s_cmp_lg_u64 vcc, 0", "s_cbranch_scc1 %s" % name, name + "_ok:"]

V_INIT = 18
LD_INIT = "buffer_load_dword v%d, v19, %s, 0 offen sc1" % (V_INIT, sr(SRD_DBG, 4))

def flag_store(sa, w0only=None, v=19):
    o = []
    if w0only: o += ["s_cmp_lg_u32 s%d, 0" % S_W, "s_cbranch_scc1 %s" % w0only]
    o += ["v_mov_b32 v%d, 1" % v, "s_mov_b64 exec, 1",
          "buffer_store_dword v%d, off, %s, s%d sc1" % (v, sr(SRD_WS, 4), sa), "s_mov_b64 exec, -1"]
    if w0only: o.append(w0only + ":")
    return ("RAW", o)

S_KVF = 70
S_PFX = 39
def kernel(A, name, opts):
    k = K(A, name, opts)
    kernel_header(A, name)
    k.stamp("start")
    prologue(k)
    PFA, PFJ = 30, 31
    g64 = opts.get("pf64")
    def pf_addr():
        return ["v_bfe_u32 v%d, v%d, 2, 2" % (PFA, V_LANE), "s_lshl_b32 s%d, s%d, 2" % (S_T2, S_GS), "v_add_u32 v%d, s%d, v%d" % (PFA, S_T2, PFA),
                "v_lshlrev_b32 v%d, 13, v%d" % (PFA, PFA), "v_and_b32 v%d, 3, v%d" % (PFA + 1, V_LANE), "v_lshl_add_u32 v%d, v%d, 6, v%d" % (PFA, PFA + 1, PFA),
                "s_lshl_b32 s%d, s%d, 8" % (S_T2, S_H), "v_add_u32 v%d, s%d, v%d" % (PFA, S_T2, PFA)]
    def pf(srd_, p): return ["s_mov_b32 s%d, 0x%x" % (S_PFX, p << 20), ("buffer_load_dword v%d, v%d, %s, s%d offen" % (PFJ, PFA, sr(srd_, 4), S_PFX), "pf")]
    def pro(A):
        A(pf_addr())
        A([x for x in tail.router_loads() if not isinstance(x, tuple)])
    hooks = {"pro0": init_zero, "pro2": init_flag, "pro": pro, "pro1": [x for x in tail.router_loads() if isinstance(x, tuple)]}
    def addqm(kap, x): hooks.setdefault(("qm", kap), []).extend(x)
    for p in range(4):
        addqm(opts.get("pfv", 8) + opts.get("pfd", 2) * p, pf(SRD_UV, p))
        addqm(opts.get("pfq", 18) + opts.get("pfd", 2) * p, pf(SRD_WQ, p))
    qx = Q(tail.router_calc(), cap=2)
    for kap in range(10, 22): hooks[kap] = lambda k: [qx]
    addqm(19, ["v_and_b32 v19, 3, v%d" % V_LANE, "v_lshlrev_b32 v19, 2, v19"])
    hooks[("pre", 20)] = [(LD_INIT, "init")]
    hooks[("tag", 28)] = ["init"]
    hooks[("pre", 28)] = chk("init_spin", V_INIT) + tail.router_store()
    hooks[("pre", 29)] = tail.aux_ptrs()
    a1, a2 = tail.aux_loads()
    def drop(lst, pat): return [x for x in lst if not (isinstance(x, tuple) and pat in x[0])]
    if opts.get("nomw"): a2 = drop(a2, "dwordx4") + [a2[-1]]
    qa = Q(a1, cap=2, period=opts.get("auxp", 16))
    kvfa = ["s_lshl_b32 s%d, s%d, 7" % (S_KVF, S_H), "s_lshl_b32 s%d, s%d, 2" % (S_KVF + 1, S_J),
            "s_add_u32 s%d, s%d, s%d" % (S_KVF, S_KVF, S_KVF + 1), "s_add_u32 s%d, s%d, 0x%x" % (S_KVF, S_KVF, KVF_OFF)]
    ev = {}
    ev.setdefault(40, []).extend(kvfa)
    ev.setdefault(opts.get("mwk", 77), []).extend(a2)
    ev.setdefault(opts.get("wdk", 84), []).extend(tail.wd_loads())
    ev.setdefault(opts.get("wok", 88), []).extend(tail.wo_touch(PFJ))
    def mkhook(kap):
        def f(k):
            qa.add(ev.get(kap, []))
            return [qa]
        return f
    for kap in range(30, 96): hooks[kap] = mkhook(kap)
    hooks[("noqe", opts.get("mwk", 77))] = 1
    hooks[("tag", 83)] = [("st", 3)]
    hooks[("pre", 83)] = [flag_store(S_KVF, "kvf_skip", v=18)]
    addqm(84, tail.key_loads())
    hooks[("pre", 92)] = ["s_load_dwordx2 %s, s[0:1], 96" % sr(SRD_OUT, 2)]
    frontend(k, hooks)
    assert not qx.items and not qa.items
    k.stamp("fe")
    if opts.get("feonly"):
        A("s_waitcnt vmcnt(0)")
        k.stamp("end")
        dump_stamps(k)
        A.label("%s_end" % name)
        A("s_endpgm")
        spin(A, "init_spin", LD_INIT, V_INIT, "init_spin_ok")
        return k
    ld_kv = "buffer_load_dword v21, v20, %s, s%d offen sc1" % (sr(SRD_WS, 4), S_POI)
    A("v_and_b32 v20, 7, v%d" % V_LANE)
    A("v_lshlrev_b32 v20, 2, v20")
    A("s_lshl_b32 s%d, s%d, 7" % (S_POI, S_H))
    A("s_add_u32 s%d, s%d, 0x%x" % (S_POI, S_POI, KVF_OFF))
    A((ld_kv, "kvf"))
    A(("WAITVM", "key"))
    A(tail.key_min(35))
    A(chk("key_spin", 35))
    A(tail.top2(32, S_T4, S_T5))
    tail.xsel_dma(A)
    A(att.setup())
    A(att.zero_a())
    A(tail.tail_setup())
    A(("WAITVM", "kvf"))
    A(chk("kv_spin", 21))
    k.stamp("kvf")
    att.prefetch(A)
    k.stamp("a_pf")
    A(("WAITVM", "aux"))
    A(tail.mw_write())
    for c in range(8): A("v_mov_b32 v%d, v%d" % (V_WD2 + c, tail.V_WDT + c))
    A("s_waitcnt lgkmcnt(0)")
    A("s_barrier")
    tail.mod(A, 32, 128)
    A(att.zero_o(0) + att.zero_p())
    k.stamp("aux")
    rest = att.attention(k, tail.fin_last())
    sp = tail.p3(k, rest, chk)
    if opts.get("stamps") or opts.get("cyc"):
        A("s_waitcnt vmcnt(0)")
        k.stamp("end")
        dump_stamps(k)
    A.label("%s_end" % name)
    A("s_endpgm")
    att.redo(k)
    spin(A, "init_spin", LD_INIT, V_INIT, "init_spin_ok")
    spin(A, "kv_spin", ld_kv, 21, "kv_spin_ok")
    spin(A, "key_spin", tail.key_loads(), tail.key_min(35) + ["v_cmp_eq_u32 vcc, 0, v35"], "key_spin_ok")
    for nm, ld, c, af in sp: spin(A, nm, ld, c, nm + "_ok", af)
    return k

def build(out, opts):
    A = Asm()
    A.raw('.amdgcn_target "amdgcn-amd-amdhsa--gfx950"')
    A.raw(".text")
    name = "gated_mix__compressed_kv_cla__moe_arch_mod__prompt_kernel"
    k = kernel(A, name, opts)
    errs, n = check(A)
    for e in errs: print(e, file=sys.stderr)
    print("instructions:", n, "hazards:", len(errs), "maxout:", A.maxout, file=sys.stderr)
    l = "; @launch kernel=%s grid=(256,1,1) block=(256,1,1) lds=163840\n; stamps: %s" % (name, " ".join(k.stn))
    open(out, "w").write(mk2.HEAD + l + "\n" + A.text() + '.section .rodata,"a"\n' + kernel_desc(name, 512, 256))
if __name__ == "__main__":
    opts = {k.split('=')[0]: (int(k.split('=')[1]) if '=' in k else True) for k in sys.argv[2:]}
    build(sys.argv[1], opts)
```
